```python
import torch

def _softmax(x, axis=-1):
    return torch.softmax(x, dim=axis)
def _gelu(x):
    return torch.nn.functional.gelu(x, approximate="tanh")
def _silu(x):
    return torch.nn.functional.silu(x)
def _sigmoid(x):
    return torch.sigmoid(x)
def _layernorm(x, axis=-1, eps=1e-5):
    m = x.mean(dim=axis, keepdim=True)
    v = x.var(dim=axis, keepdim=True, unbiased=False)
    return (x - m) / torch.sqrt(v + eps)
def _scatter_add(tgt, idx, src, axis=0):
    return tgt.clone().index_add_(axis, idx, src)
def _segment_sum(src, seg, n):
    out = torch.zeros((n,) + src.shape[1:], dtype=src.dtype)
    return out.index_add_(0, seg, src)
def _pad(x, pw):
    flat = tuple(v for pair in reversed(pw) for v in pair)
    return torch.nn.functional.pad(x, flat)

kernel_name = 'standalone__gqa_block_cached__near_ridge'

def setup_inputs():

    _w = (lambda a: (lambda t: t.to(torch.bfloat16) if t.is_floating_point() else t)(torch.as_tensor(a)))
    B, Sq, D = 16, 128, 640
    Hq, Hkv, Sk, Dh = 32, 32, 512, 128
    assert Hq % Hkv == 0, (Hq, Hkv)
    return {
        "x": _w((lambda *s: torch.randn(*s, dtype=torch.bfloat16) * 0.8)(B, Sq, D)),
        "k_cache": _w((lambda *s: torch.randn(*s, dtype=torch.bfloat16) * 0.8)(B, Hkv, Sk, Dh)),
        "v_cache": _w((lambda *s: torch.randn(*s, dtype=torch.bfloat16) * 0.05)(B, Hkv, Sk, Dh)),
        "wq": _w((lambda *s: torch.randn(*s, dtype=torch.bfloat16) * 0.8)(D, Hq * Dh) * (D ** -0.5)),
        "wo": _w((lambda *s: torch.randn(*s, dtype=torch.bfloat16) * 0.05)(Hq * Dh, D) * ((Hq * Dh) ** -0.5)),
    }

def reference(x, k_cache, v_cache, wq, wo):
    B, Sq, D = x.shape
    Hq, Dh = 32, 128
    Hkv = k_cache.shape[1]
    rep = Hq // Hkv
    q = (lambda x, *d: x.permute(*d))((x @ wq).reshape(B, Sq, Hq, Dh), 0, 2, 1, 3)
    k = (lambda x, n, axis: torch.repeat_interleave(x, n, dim=axis))(k_cache, rep, axis=1)
    v = (lambda x, n, axis: torch.repeat_interleave(x, n, dim=axis))(v_cache, rep, axis=1)
    scores = torch.einsum("bhqd,bhkd->bhqk", q, k) * (Dh ** -0.5)
    p = _softmax(scores, axis=-1)
    o = torch.einsum("bhqk,bhkd->bhqd", p, v)
    return (lambda x, *d: x.permute(*d))(o, 0, 2, 1, 3).reshape(B, Sq, Hq * Dh) @ wo
```

```python
import re

TRANS = ('v_exp_f32', 'v_log_f32', 'v_rcp_f32', 'v_rsq_f32', 'v_sqrt_f32', 'v_sin_f32', 'v_cos_f32')
NODST_S = ('s_cmp', 's_cbranch', 's_waitcnt', 's_barrier', 's_nop', 's_setprio', 's_branch', 's_endpgm',
           's_sleep', 's_bitcmp', 's_setreg', 's_sethalt')


def regs_of(tok):
    tok = tok.strip()
    neg = tok.lstrip('-')
    m = re.fullmatch(r'abs\((.*)\)', neg)
    if m:
        neg = m.group(1)
    m = re.fullmatch(r'\|(.*)\|', neg)
    if m:
        neg = m.group(1)
    m = re.fullmatch(r'([vsa])(\d+)', neg)
    if m:
        return m.group(1), {int(m.group(2))}
    m = re.fullmatch(r'([vsa])\[(\d+):(\d+)\]', neg)
    if m:
        return m.group(1), set(range(int(m.group(2)), int(m.group(3)) + 1))
    if neg in ('vcc', 'vcc_lo', 'vcc_hi'):
        return 's', {'vcc'}
    if neg in ('exec', 'exec_lo', 'exec_hi'):
        return 's', {'exec'}
    if neg == 'm0':
        return 's', {'m0'}
    return None, set()


class Ins:
    __slots__ = ('text', 'op', 'kind', 'vr', 'vw', 'sr', 'sw', 'passes', 'mc', 'mab', 'md', 'states', 'tag',
                 'wide', 'auto', 'comment', 'dpp')

    def __init__(self, text, tag=None, comment=None):
        self.text = text
        self.tag = tag
        self.comment = comment
        self.auto = False
        self.vr, self.vw, self.sr, self.sw = set(), set(), set(), set()
        self.passes = 0
        self.mc = self.mab = self.md = set()
        self.states = 1
        self.wide = False
        self.dpp = False
        t = text.strip()
        if t.endswith(':') or t.startswith('.') or t.startswith(';') or not t:
            self.op, self.kind, self.states = '', 'label', 0
            return
        parts = t.split(None, 1)
        op = self.op = parts[0]
        rest = parts[1] if len(parts) > 1 else ''
        ops = [o.strip() for o in rest.split(',')] if rest else []
        mods = []
        if ops:
            last = ops[-1].split()
            ops[-1] = last[0] if last else ''
            mods = last[1:]
        R = [regs_of(o) for o in ops]

        def rd(i):
            if i < len(R):
                k, s = R[i]
                if k == 'v':
                    self.vr |= s
                elif k == 's':
                    self.sr |= s
                elif k == 'a':
                    self.vr |= {x + 256 for x in s}

        def wr(i):
            k, s = R[i]
            if k == 'v':
                self.vw |= s
            elif k == 's':
                self.sw |= s
            elif k == 'a':
                self.vw |= {x + 256 for x in s}

        def vset(i):
            k, s = R[i]
            if k == 'v':
                return set(s)
            if k == 'a':
                return {x + 256 for x in s}
            return set()

        if op.startswith('v_mfma'):
            self.kind = 'mfma'
            self.passes = 8 if '32x32' in op else 4
            wr(0); rd(1); rd(2); rd(3)
            self.md = vset(0)
            self.mab = vset(1) | vset(2)
            self.mc = vset(3)
        elif op.startswith('v_'):
            base = op.replace('_e32', '').replace('_e64', '')
            self.kind = 'trans' if base in TRANS else 'valu'
            if any(m.startswith(('quad_perm', 'row_', 'wave_')) for m in mods) or op.endswith('_dpp'):
                self.dpp = True
            if op.startswith('v_permlane') and 'swap' in op:
                self.kind = 'perm'
                wr(0); wr(1); rd(0); rd(1)
            elif op.startswith(('v_readfirstlane', 'v_readlane')):
                self.kind = 'rdlane'
                wr(0)
                for i in range(1, len(R)):
                    rd(i)
            elif op == 'v_nop':
                pass
            else:
                wr(0)
                start = 1
                if op.startswith(('v_add_co', 'v_sub_co', 'v_addc_co', 'v_subb_co')):
                    wr(1)
                    start = 2
                for i in range(start, len(R)):
                    rd(i)
                if op.startswith(('v_fmac', 'v_pk_fmac', 'v_writelane', 'v_dot2c')) or self.dpp:
                    rd(0)
                if op.startswith('v_cmpx'):
                    self.sw.add('exec')
        elif op.startswith('ds_'):
            if op.startswith(('ds_read', 'ds_bpermute', 'ds_permute', 'ds_swizzle')) or '_rtn_' in op:
                self.kind = 'dsr'
                wr(0)
                for i in range(1, len(R)):
                    rd(i)
            else:
                self.kind = 'dsw'
                for i in range(len(R)):
                    rd(i)
        elif op.startswith(('buffer_', 'global_')):
            if op.startswith(('buffer_wbl2', 'buffer_inv')):
                self.kind = 'vstore'
            elif 'lds' in mods or '_lds_' in op:
                self.kind = 'vdma'
                for i in range(len(R)):
                    rd(i)
                self.sr.add('m0')
            elif '_load' in op:
                self.kind = 'vload'
                wr(0)
                for i in range(1, len(R)):
                    rd(i)
            elif '_atomic' in op:
                for i in range(len(R)):
                    rd(i)
                if 'sc0' in mods:
                    self.kind = 'vload'
                    wr(0)
                else:
                    self.kind = 'vstore'
            else:
                self.kind = 'vstore'
                for i in range(len(R)):
                    rd(i)
                if op.endswith(('x3', 'x4')):
                    self.wide = True
                    self.mab = vset(0) if op.startswith('buffer_') else vset(1)
        elif op.startswith(('s_load', 's_buffer_load', 's_memtime', 's_memrealtime', 's_atomic')):
            self.kind = 'smem'
            wr(0)
            for i in range(1, len(R)):
                rd(i)
        elif op.startswith('s_'):
            self.kind = 'salu'
            if op == 's_nop':
                self.kind = 'nop'
                self.states = int(ops[0], 0) + 1
            elif op == 's_waitcnt':
                self.kind = 'wait'
            elif op == 's_barrier':
                self.kind = 'barrier'
            elif op.startswith(('s_cbranch', 's_branch', 's_endpgm')):
                self.kind = 'branch'
            elif op.startswith(NODST_S):
                for i in range(len(R)):
                    rd(i)
            else:
                wr(0)
                for i in range(1, len(R)):
                    rd(i)
                if op.startswith(('s_addk', 's_mulk', 's_cmov', 's_bitset')):
                    rd(0)
                if 'saveexec' in op:
                    self.sw.add('exec')
                    self.sr.add('exec')
        else:
            raise ValueError('unknown instruction ' + text)


VALU_K = ('valu', 'trans', 'perm', 'rdlane')
VMEM_K = ('vload', 'vdma', 'vstore')


def need_states(p, c):
    n = 0
    pv = p.kind in VALU_K
    cv = c.kind in VALU_K
    if pv and p.vw:
        if c.kind == 'mfma' and (p.vw & c.vr):
            n = max(n, 2)
        if c.kind == 'perm' and (p.vw & c.vr):
            n = max(n, 2)
        if c.kind == 'rdlane' and (p.vw & c.vr):
            n = max(n, 1)
        if c.dpp and (p.vw & c.vr):
            n = max(n, 2)
        if p.kind == 'trans' and cv and c.kind != 'trans' and (p.vw & c.vr):
            n = max(n, 1)
    if pv and p.sw:
        if cv and (p.sw & c.sr):
            n = max(n, 4 if c.op.startswith(('v_readlane', 'v_writelane')) else 2)
        if c.kind in VMEM_K and (p.sw & c.sr):
            n = max(n, 5)
        if 'exec' in p.sw and (c.kind in ('mfma', 'perm', 'rdlane') or c.dpp):
            n = max(n, 5)
        if c.kind in ('salu', 'smem') and (p.sw & c.sr):
            n = max(n, 1)
    if p.kind == 'mfma':
        big = 12 if p.passes == 8 else 8
        mid = 10 if p.passes == 8 else 6
        if c.kind == 'mfma':
            if p.md & c.mab:
                n = max(n, big)
            if p.md & c.mc:
                if not (p.md == c.mc and p.passes == c.passes):
                    n = max(n, mid)
            elif p.md & c.md:
                n = max(n, mid)
        elif cv or c.kind in VMEM_K or c.kind in ('dsr', 'dsw'):
            if p.md & (c.vr | c.vw):
                n = max(n, big)
            if cv and (p.mc & c.vw):
                n = max(n, 7 if p.passes == 8 else 3)
    if p.kind == 'salu' and 'm0' in p.sw and c.kind == 'vdma':
        n = max(n, 1)
    if p.kind == 'vstore' and p.wide and (p.mab & c.vw):
        n = max(n, 2)
    return n


class Kern:
    def __init__(self, name):
        self.name = name
        self.ins = []
        self.vmq = []
        self.lgq = []
        self.marks = {}
        self.nops = []
        self.tail = []
        self.smem_pending = False

    def _push(self, i):
        if i.kind not in ('label', 'nop', 'wait', 'barrier', 'branch'):
            dist = 0
            need = 0
            for p in reversed(self.ins):
                if dist >= 20:
                    break
                r = need_states(p, i)
                if r > dist:
                    need = max(need, r - dist)
                dist += p.states
            if need:
                nop = Ins('s_nop %d' % (need - 1))
                nop.auto = True
                self.ins.append(nop)
                self.nops.append((len(self.ins) - 1, need, i.text))
        self.ins.append(i)

    def _wait(self, vm=None, lg=None):
        if vm is not None and vm >= len(self.vmq):
            vm = None
        if lg is not None and lg >= len(self.lgq) and not (lg == 0 and self.smem_pending):
            lg = None
        if vm is None and lg is None:
            return
        parts = []
        if vm is not None:
            assert vm <= 63
            parts.append('vmcnt(%d)' % vm)
            self.vmq = self.vmq[len(self.vmq) - vm:] if vm else []
        if lg is not None:
            lg = min(lg, 15)
            parts.append('lgkmcnt(%d)' % lg)
            self.lgq = self.lgq[len(self.lgq) - lg:] if lg else []
            if lg == 0:
                self.smem_pending = False
        self.ins.append(Ins('s_waitcnt ' + ' '.join(parts)))

    def I(self, text, tag=None, c=None):
        i = Ins(text, tag, c)
        touch = i.vr | i.vw
        vm = lg = None
        if touch:
            for idx in range(len(self.vmq) - 1, -1, -1):
                if self.vmq[idx].vw & touch:
                    vm = len(self.vmq) - 1 - idx
                    break
            for idx in range(len(self.lgq) - 1, -1, -1):
                if self.lgq[idx].vw & touch:
                    lg = len(self.lgq) - 1 - idx
                    break
        self._wait(vm, lg)
        self._push(i)
        if i.kind in VMEM_K:
            self.vmq.append(i)
            assert len(self.vmq) <= 63, 'vmcnt overflow'
        elif i.kind in ('dsr', 'dsw'):
            self.lgq.append(i)
        elif i.kind == 'smem':
            self.smem_pending = True
        return i

    def wait_tag(self, *tags, lg=None):
        vm = None
        for idx in range(len(self.vmq) - 1, -1, -1):
            if self.vmq[idx].tag in tags:
                vm = len(self.vmq) - 1 - idx
                break
        self._wait(vm, lg)

    def wait_lg_tag(self, *tags):
        for idx in range(len(self.lgq) - 1, -1, -1):
            if self.lgq[idx].tag in tags:
                self._wait(None, len(self.lgq) - 1 - idx)
                return

    def wait(self, vm=None, lg=None):
        self._wait(vm, lg)

    def label(self, name):
        self.ins.append(Ins(name + ':'))

    def raw(self, text):
        self.ins.append(Ins(text))

    def mark(self, name):
        self.marks.setdefault(name, []).append(len(self.ins))

    def fold(self, name, first, unroll, trips, sreg):
        mk = self.marks[name]
        segs = [(mk[first + t * unroll], mk[first + (t + 1) * unroll]) for t in range(trips)]

        def split(a, b):
            out = []
            vm = lg = None
            nop = 0
            for i in self.ins[a:b]:
                if i.kind == 'wait':
                    m = re.search(r'vmcnt\((\d+)\)', i.text)
                    if m:
                        vm = int(m.group(1)) if vm is None else min(vm, int(m.group(1)))
                    m = re.search(r'lgkmcnt\((\d+)\)', i.text)
                    if m:
                        lg = int(m.group(1)) if lg is None else min(lg, int(m.group(1)))
                elif i.kind == 'nop' and i.auto:
                    nop += i.states
                else:
                    out.append([i, vm, lg, nop])
                    vm = lg = None
                    nop = 0
            assert vm is None and lg is None and nop == 0, 'segment ends with a wait'
            return out
        ref = split(*segs[0])
        for t in range(1, trips):
            cur = split(*segs[t])
            for x, y in zip(ref, cur):
                if x[0].text != y[0].text:
                    raise AssertionError('fold %s trip %d mismatch:\n  %s\n  %s' % (name, t, x[0].text, y[0].text))
            assert len(ref) == len(cur), 'fold %s trip %d length mismatch %d %d' % (name, t, len(ref), len(cur))
            for x, y in zip(ref, cur):
                for k in (1, 2):
                    if y[k] is not None:
                        if x[k] != y[k]:
                            print('   fold %s: merged wait at %s: %s vs %s (trip %d)' % (name, x[0].text, x[k], y[k], t))
                        x[k] = y[k] if x[k] is None else min(x[k], y[k])
                x[3] = max(x[3], y[3])
        body = []
        for i, vm, lg, nop in ref:
            if vm is not None or lg is not None:
                p = []
                if vm is not None:
                    p.append('vmcnt(%d)' % vm)
                if lg is not None:
                    p.append('lgkmcnt(%d)' % lg)
                body.append(Ins('s_waitcnt ' + ' '.join(p)))
            if nop:
                n = Ins('s_nop %d' % (nop - 1))
                n.auto = True
                body.append(n)
            body.append(i)
        a0 = segs[0][0]
        bl = segs[-1][1]
        lab = 'L_%s_%s_loop%d' % (self.name, name, first)
        pre = [Ins('s_mov_b32 %s, %d' % (sreg, trips)), Ins(lab + ':')]
        post = [Ins('s_sub_u32 %s, %s, 1' % (sreg, sreg)), Ins('s_cmp_lg_u32 %s, 0' % sreg),
                Ins('s_cbranch_scc1 ' + lab)]
        new = self.ins[:a0] + pre + body + post + self.ins[bl:]
        delta = len(new) - len(self.ins)
        for nm, lst in self.marks.items():
            for k in range(len(lst)):
                if lst[k] >= bl:
                    lst[k] += delta
                elif lst[k] > a0:
                    lst[k] = -1
        self.ins = new

    def text(self):
        out = []
        for i in self.ins:
            if i.kind == 'label':
                out.append(i.text)
            else:
                s = '    ' + i.text
                if i.comment:
                    s += '    ; ' + i.comment
                out.append(s)
        out += self.tail
        return '\n'.join(out) + '\n'

    def report(self):
        n = sum(1 for i in self.ins if i.kind != 'label')
        print('%s: %d instrs, auto nops: %d' % (self.name, n, len(self.nops)))
        for idx, need, t in self.nops[:0]:
            print('   nop %d before: %s' % (need, t))
```

```python
import sys
from asmlib import *

NAME = 'standalone__gqa_block_cached__near_ridge'
KA = NAME + '_kernel'
KB = 'gqa_outproj_kernel'

LDS_K = 1024
KSLOT = 8448
LDS_V = LDS_K + 4 * KSLOT
VSLOT = 8704
LDS_A = LDS_V + 4 * VSLOT
WOP_OFF = 16 * 1024 * 1024
CSCALE = 0x3e0293ee
import struct, math
CSCALE = struct.unpack('<I', struct.pack('<f', math.log2(math.e) / math.sqrt(128.0)))[0]
THR = struct.unpack('<I', struct.pack('<f', 16384.0))[0]


def vr(a, n):
    return 'v[%d:%d]' % (a, a + n - 1) if n > 1 else 'v%d' % a


def sr(a, n):
    return 's[%d:%d]' % (a, a + n - 1) if n > 1 else 's%d' % a


MF32 = 'v_mfma_f32_32x32x16_bf16'
MF16 = 'v_mfma_f32_16x16x32_bf16'


def srd(k, d, base_lo, base_hi, off_lo=None, nrec=0, off_hi=None):
    if off_lo is None:
        k.I('s_mov_b32 s%d, s%d' % (d, base_lo))
        k.I('s_mov_b32 s%d, s%d' % (d + 1, base_hi))
    else:
        k.I('s_add_u32 s%d, s%d, %s' % (d, base_lo, off_lo))
        k.I('s_addc_u32 s%d, s%d, 0' % (d + 1, base_hi))
    k.I('s_mov_b32 s%d, %s' % (d + 2, nrec))
    k.I('s_mov_b32 s%d, 0x20000' % (d + 3))


def gen_a(cfg):
    k = Kern('a')
    sX, sK, sV, sWQ, sWO, sWS = 20, 24, 28, 32, 36, 40
    sW, sB, sH, sT0, sT1, sT2 = 48, 49, 50, 51, 52, 53
    sMK, sMV, sMX = 54, 55, 56
    sWo, sXo, sKo, sVo = 57, 58, 59, 60
    sLoop, sRet, sThr, sC, sPk, sOo = 61, 62, 63, 64, 65, 66
    O, Q, NEGM, S0, P0, KF, VF, TMP = 0, 64, 96, 112, 144, 160, 192, 224
    S = [S0, S0 + 16]
    P = [P0, P0 + 8]
    vL, vLs, vKra, vVra, vKdo, vVdo = 232, 233, 234, 235, 236, 237
    vWra, vXra, vWd0, vWd1, vXdo, vLane = 238, 239, 240, 241, 242, 243
    vT0, vT1, vT2, vT3, vPk0, vPk1, vOo = 244, 245, 246, 247, 248, 249, 250
    WF = [KF, VF]
    XF = [S0, S0 + 16]
    PKT = list(range(NEGM, NEGM + 16)) + list(range(P0, P0 + 16))

    k.I('s_cmp_ge_u32 s2, 512')
    k.I('s_cbranch_scc1 L_a_end')
    k.I('s_load_dwordx16 s[4:19], s[0:1], 0')
    k.I('v_lshrrev_b32 v%d, 6, v0' % vT0)
    k.I('v_and_b32 v%d, 63, v0' % vLane)
    k.I('v_readfirstlane_b32 s%d, v%d' % (sW, vT0))
    k.I('s_and_b32 s%d, s2, 7' % sT0)
    k.I('s_lshr_b32 s%d, s2, 3' % sT1)
    k.I('s_and_b32 s%d, s%d, 1' % (sB, sT0))
    k.I('s_lshl_b32 s%d, s%d, 3' % (sB, sB))
    k.I('s_and_b32 s%d, s%d, 7' % (sT2, sT1))
    k.I('s_add_u32 s%d, s%d, s%d' % (sB, sB, sT2))
    k.I('s_lshr_b32 s%d, s%d, 1' % (sH, sT0))
    k.I('s_lshl_b32 s%d, s%d, 3' % (sH, sH))
    k.I('s_lshr_b32 s%d, s%d, 3' % (sT2, sT1))
    k.I('s_add_u32 s%d, s%d, s%d' % (sH, sH, sT2))
    L = vLane
    k.I('v_lshrrev_b32 v%d, 4, v%d' % (vT0, L))
    k.I('v_lshlrev_b32 v%d, 3, v%d' % (vT1, vT0))
    k.I('s_lshl_b32 s%d, s%d, 1' % (sT0, sW))
    k.I('v_add_u32 v%d, s%d, v%d' % (vT1, sT0, vT1))
    k.I('v_and_b32 v%d, 15, v%d' % (vT2, L))
    k.I('v_lshlrev_b32 v%d, 4, v%d' % (vT3, vT2))
    k.I('v_lshl_add_u32 v%d, v%d, 13, v%d' % (vWd0, vT1, vT3))
    k.I('v_add_u32 v%d, 0x2000, v%d' % (vWd1, vWd0))
    k.I('v_lshl_add_u32 v%d, v%d, 8, v%d' % (vVdo, vT1, vT3))
    k.I('v_and_b32 v%d, 1, v%d' % (vT0, vT0))
    k.I('v_xor_b32 v%d, v%d, v%d' % (vT2, vT2, vT0))
    k.I('v_lshlrev_b32 v%d, 4, v%d' % (vT3, vT2))
    k.I('v_lshl_add_u32 v%d, v%d, 8, v%d' % (vKdo, vT1, vT3))
    k.I('v_bfe_u32 v%d, v%d, 4, 1' % (vT0, L))
    k.I('v_bfe_u32 v%d, v%d, 3, 1' % (vT1, L))
    k.I('v_lshrrev_b32 v%d, 5, v%d' % (vT2, L))
    k.I('v_lshlrev_b32 v%d, 2, v%d' % (vT3, vT0))
    k.I('v_lshl_add_u32 v%d, v%d, 3, v%d' % (vT3, vT1, vT3))
    k.I('v_lshl_add_u32 v%d, v%d, 4, v%d' % (vT3, vT2, vT3))
    k.I('s_lshl_b32 s%d, s%d, 5' % (sT0, sW))
    k.I('v_add_u32 v%d, s%d, v%d' % (vT3, sT0, vT3))
    k.I('v_mul_u32_u24 v%d, 0x500, v%d' % (vT3, vT3))
    k.I('v_and_b32 v%d, 7, v%d' % (vT1, L))
    k.I('v_xor_b32 v%d, v%d, v%d' % (vT1, vT1, vT0))
    k.I('v_lshl_add_u32 v%d, v%d, 4, v%d' % (vXdo, vT1, vT3))
    k.I('s_mul_i32 s%d, s%d, %d' % (sMK, sW, 2 * 1056))
    k.I('s_add_u32 s%d, s%d, %d' % (sMK, sMK, LDS_K))
    k.I('s_mul_i32 s%d, s%d, %d' % (sMV, sW, 2 * 1088))
    k.I('s_add_u32 s%d, s%d, %d' % (sMV, sMV, LDS_V))
    k.I('s_mul_i32 s%d, s%d, %d' % (sMX, sW, 4224))
    k.I('s_add_u32 s%d, s%d, %d' % (sMX, sMX, LDS_K))
    k.wait(lg=0)
    k.I('s_mul_i32 s%d, s%d, %d' % (sT0, sB, 163840))
    srd(k, sX, 4, 5, 's%d' % sT0, 163840)
    k.I('s_lshl_b32 s%d, s%d, 8' % (sT0, sH))
    srd(k, sWQ, 10, 11, 's%d' % sT0, 0)
    k.I('s_sub_u32 s%d, %d, s%d' % (sWQ + 2, 640 * 8192, sT0))
    k.I('s_mov_b32 s%d, 0' % sWo)
    k.I('s_mov_b32 s%d, 0' % sXo)

    def dmaW(i):
        slot = i % 4
        for j in range(2):
            yield ('s_add_u32 m0, s%d, %d' % (sMV, slot * VSLOT + j * 1088), None)
            yield ('buffer_load_dwordx4 v%d, %s, s%d offen lds' % ([vWd0, vWd1][j], sr(sWQ, 4), sWo), 'W%d' % i)
        yield ('s_add_u32 s%d, s%d, %d' % (sWo, sWo, 32 * 8192), None)

    def dmaX(c):
        par = c % 2
        for j in range(4):
            yield ('s_add_u32 m0, s%d, %d' % (sMX, par * 16896 + j * 1056 - j * 1280), None) if (par or True) else None
            off = ' offset:%d' % (j * 1280) if j else ''
            yield ('buffer_load_dwordx4 v%d, %s, s%d offen%s lds' % (vXdo, sr(sX, 4), sXo, off), 'X%d' % c)
        yield ('s_add_u32 s%d, s%d, 128' % (sXo, sXo), None)

    def dmaK(t):
        slot = t % 4
        for j in range(2):
            yield ('s_add_u32 m0, s%d, %d' % (sMK, slot * KSLOT + j * (1056 - 256)), None)
            off = ' offset:256' if j else ''
            yield ('buffer_load_dwordx4 v%d, %s, s%d offen%s lds%s' % (vKdo, sr(sK, 4), sKo, off, cfg['kvmod']), 'K%d' % t)
        yield ('s_add_u32 s%d, s%d, 8192' % (sKo, sKo), None)

    def dmaV(t):
        slot = t % 4
        for j in range(2):
            yield ('s_add_u32 m0, s%d, %d' % (sMV, slot * VSLOT + j * (1088 - 256)), None)
            off = ' offset:256' if j else ''
            yield ('buffer_load_dwordx4 v%d, %s, s%d offen%s lds%s' % (vVdo, sr(sV, 4), sVo, off, cfg['kvmod']), 'V%d' % t)
        yield ('s_add_u32 s%d, s%d, 8192' % (sVo, sVo), None)

    def emit(g):
        for t, tag in g:
            k.I(t, tag)

    emit(dmaW(0)); emit(dmaX(0)); emit(dmaW(1)); emit(dmaX(1)); emit(dmaW(2)); emit(dmaW(3))
    k.I('s_lshl_b32 s%d, s%d, 5' % (sT0, sB))
    k.I('s_add_u32 s%d, s%d, s%d' % (sT0, sT0, sH))
    k.I('s_lshl_b32 s%d, s%d, 17' % (sT0, sT0))
    srd(k, sK, 6, 7, 's%d' % sT0, 131072)
    srd(k, sV, 8, 9, 's%d' % sT0, 131072)
    srd(k, sWO, 12, 13, None, 4096 * 1280)
    srd(k, sWS, 18, 19, None, WOP_OFF + 5242880)
    k.I('s_mov_b32 s%d, 0' % sKo)
    k.I('s_mov_b32 s%d, 0' % sVo)
    k.I('s_mov_b32 s%d, 0x%x' % (sThr, THR))
    k.I('s_mov_b32 s%d, 0x%x' % (sC, CSCALE))
    if cfg['touch']:
        k.I('v_lshlrev_b32 v%d, 7, v%d' % (vT0, L))
        k.I('s_lshl_b32 s%d, s%d, 13' % (sT0, sW))
        for j in range(cfg['touch']):
            k.I('buffer_load_dword v%d, v%d, %s, s%d offen' % (Q + 2 * j, vT0, sr(sK, 4), sT0), 'touch')
            k.I('buffer_load_dword v%d, v%d, %s, s%d offen' % (Q + 2 * j + 1, vT0, sr(sV, 4), sT0), 'touch')
            k.I('s_add_u32 s%d, s%d, 32768' % (sT0, sT0))
    k.I('s_lshl_b32 s%d, s2, 1' % sT0)
    k.I('s_lshr_b32 s%d, s%d, 1' % (sT1, sW))
    k.I('s_add_u32 s%d, s%d, s%d' % (sT0, sT0, sT1))
    k.I('s_and_b32 s%d, s%d, 1' % (sT1, sW))
    k.I('s_lshl_b32 s%d, s%d, 1' % (sT1, sT1))
    k.I('s_mul_i32 s%d, s%d, 5' % (sPk, sT0))
    k.I('s_add_u32 s%d, s%d, s%d' % (sPk, sPk, sT1))
    k.I('s_lshl_b32 s%d, s%d, 10' % (sPk, sPk))
    k.I('s_add_u32 s%d, s%d, %d' % (sPk, sPk, WOP_OFF))
    k.I('s_lshr_b32 s%d, s%d, 7' % (sT2, sT0))
    k.I('s_mul_i32 s%d, s%d, 160' % (sT2, sT2))
    k.I('s_lshl_b32 s%d, s%d, 5' % (sT1, sT1))
    k.I('s_add_u32 s%d, s%d, s%d' % (sT2, sT2, sT1))
    k.I('s_and_b32 s%d, s%d, 127' % (sT0, sT0))
    k.I('s_mul_i32 s%d, s%d, %d' % (sT0, sT0, 32 * 1280))
    k.I('s_add_u32 s%d, s%d, s%d' % (sT2, sT2, sT0))
    k.I('v_lshrrev_b32 v%d, 4, v%d' % (vT0, L))
    k.I('v_mul_u32_u24 v%d, %d, v%d' % (vT0, 8 * 1280, vT0))
    k.I('v_and_b32 v%d, 15, v%d' % (vT1, L))
    k.I('v_lshl_add_u32 v%d, v%d, 1, v%d' % (vPk0, vT1, vT0))
    k.I('v_add_u32 v%d, %d, v%d' % (vPk1, 4 * 1280, vPk0))
    for j in range(3):
        for i in range(8):
            off = (i % 4) * 1280 + 32 * j
            k.I('buffer_load_ushort v%d, v%d, %s, s%d offen offset:%d' % (
                PKT[j * 8 + i], [vPk0, vPk1][i // 4], sr(sWO, 4), sT2, off), 'pk')
    k.I('v_and_b32 v%d, 7, v%d' % (vT0, L))
    k.I('v_mul_u32_u24 v%d, 1056, v%d' % (vT0, vT0))
    k.I('v_bfe_u32 v%d, v%d, 3, 2' % (vT1, L))
    k.I('v_lshl_add_u32 v%d, v%d, 8, v%d' % (vT0, vT1, vT0))
    k.I('v_lshrrev_b32 v%d, 5, v%d' % (vT2, L))
    k.I('v_and_b32 v%d, 1, v%d' % (vT1, vT1))
    k.I('v_xor_b32 v%d, v%d, v%d' % (vT1, vT1, vT2))
    k.I('v_lshl_add_u32 v%d, v%d, 4, v%d' % (vT0, vT1, vT0))
    k.I('v_add_u32 v%d, %d, v%d' % (vKra, LDS_K, vT0))
    k.I('v_bfe_u32 v%d, v%d, 4, 1' % (vT0, L))
    k.I('v_lshlrev_b32 v%d, 5, v%d' % (vT0, vT0))
    k.I('v_and_b32 v%d, 1, v%d' % (vT1, L))
    k.I('v_lshl_add_u32 v%d, v%d, 4, v%d' % (vT0, vT1, vT0))
    k.I('v_bfe_u32 v%d, v%d, 1, 1' % (vT1, L))
    k.I('v_lshl_add_u32 v%d, v%d, 3, v%d' % (vT0, vT1, vT0))
    k.I('v_bfe_u32 v%d, v%d, 2, 2' % (vT1, L))
    k.I('v_mul_u32_u24 v%d, 1088, v%d' % (vT1, vT1))
    k.I('v_add3_u32 v%d, v%d, v%d, v%d' % (vT0, vT0, vT1, vT1))
    k.I('v_sub_u32 v%d, v%d, v%d' % (vT0, vT0, vT1))
    k.I('v_add_u32 v%d, %d, v%d' % (vT0, LDS_V, vT0))
    k.I('v_lshl_add_u32 v%d, v%d, 8, v%d' % (vWra, vT2, vT0))
    k.I('v_mul_u32_u24 v%d, %d, v%d' % (vT1, 4 * 1088, vT2))
    k.I('v_add_u32 v%d, v%d, v%d' % (vVra, vT0, vT1))
    k.I('v_and_b32 v%d, 3, v%d' % (vT0, L))
    k.I('v_mul_u32_u24 v%d, 1056, v%d' % (vT0, vT0))
    k.I('v_bfe_u32 v%d, v%d, 3, 1' % (vT1, L))
    k.I('v_lshl_add_u32 v%d, v%d, 7, v%d' % (vT0, vT1, vT0))
    k.I('v_bfe_u32 v%d, v%d, 4, 1' % (vT1, L))
    k.I('v_lshl_add_u32 v%d, v%d, 9, v%d' % (vT0, vT1, vT0))
    k.I('v_bfe_u32 v%d, v%d, 2, 1' % (vT1, L))
    k.I('v_lshl_add_u32 v%d, v%d, 8, v%d' % (vT0, vT1, vT0))
    k.I('v_xor_b32 v%d, v%d, v%d' % (vT1, vT1, vT2))
    k.I('v_lshl_add_u32 v%d, v%d, 4, v%d' % (vT0, vT1, vT0))
    k.I('v_add_u32 v%d, s%d, v%d' % (vXra, sMX, vT0))
    k.I('v_bfe_u32 v%d, v%d, 4, 1' % (vT0, L))
    k.I('v_lshlrev_b32 v%d, 10, v%d' % (vT0, vT0))
    k.I('v_and_b32 v%d, 15, v%d' % (vT1, L))
    k.I('v_lshl_add_u32 v%d, v%d, 4, v%d' % (vT0, vT1, vT0))
    k.I('v_lshl_add_u32 v%d, v%d, 8, v%d' % (vOo, vT2, vT0))
    k.I('s_lshl_b32 s%d, s%d, 1' % (sOo, sB))
    k.I('s_lshr_b32 s%d, s%d, 1' % (sT0, sW))
    k.I('s_add_u32 s%d, s%d, s%d' % (sOo, sOo, sT0))
    k.I('s_lshl_b32 s%d, s%d, 19' % (sOo, sOo))
    k.I('s_lshl_b32 s%d, s%d, 14' % (sT0, sH))
    k.I('s_add_u32 s%d, s%d, s%d' % (sOo, sOo, sT0))
    k.I('s_and_b32 s%d, s%d, 1' % (sT0, sW))
    k.I('s_lshl_b32 s%d, s%d, 11' % (sT0, sT0))
    k.I('s_add_u32 s%d, s%d, s%d' % (sOo, sOo, sT0))
    for r in range(64):
        k.I('v_mov_b32 v%d, 0' % (O + r))

    def rdW(i):
        out = []
        for s in range(2):
            for T in range(4):
                for e in range(2):
                    d = WF[i % 2] + (s * 4 + T) * 4 + 2 * e
                    out.append(('ds_read_b64_tr_b16 %s, v%d offset:%d' % (
                        vr(d, 2), vWra, (i % 4) * VSLOT + e * 4352 + s * 512 + T * 64), None))
        return out

    def rdX(c):
        return [('ds_read_b128 %s, v%d offset:%d' % (vr(XF[c % 2] + 4 * s, 4), vXra, (c % 2) * 16896 + 32 * s), None)
                for s in range(4)]

    def rdK(t, dst):
        return [('ds_read_b128 %s, v%d offset:%d' % (vr(dst + 4 * s, 4), vKra, (t % 4) * KSLOT + 32 * s), None)
                for s in range(8)]

    def rdV(t):
        out = []
        for s in range(2):
            for T in range(4):
                for e in range(2):
                    d = VF + (s * 4 + T) * 4 + 2 * e
                    out.append(('ds_read_b64_tr_b16 %s, v%d offset:%d' % (
                        vr(d, 2), vVra, (t % 4) * VSLOT + (2 * s + e) * 256 + T * 64), None))
        return out

    def sched(mf, gaps):
        for g, m in enumerate(mf):
            k.I(m)
            for t, tag in gaps.get(g, []):
                k.I(t, tag)

    k.wait_tag('W0', 'X0')
    k.I('s_barrier')
    emit(rdX(0)); emit(rdW(0))
    NQ = 20
    pack_ops = []
    for j in range(3):
        for p in range(4):
            pack_ops.append(('v_lshl_or_b32 v%d, v%d, 16, v%d' % (Q + 4 * j + p, PKT[j * 8 + 2 * p + 1], PKT[j * 8 + 2 * p]), None))
    for i in range(NQ):
        k.mark('qp')
        need = []
        if i + 1 < NQ:
            need.append('W%d' % (i + 1))
        if i % 2 == 1 and (i + 1) // 2 < 10:
            need.append('X%d' % ((i + 1) // 2))
        if i == 19:
            need.append('K0')
        k.wait_tag(*need, lg=0)
        k.I('s_barrier')
        c = i // 2
        mf = []
        for s in range(2):
            for T in range(4):
                mf.append('%s %s, %s, %s, %s' % (MF32, vr(O + 16 * T, 16), vr(WF[i % 2] + (s * 4 + T) * 4, 4),
                                                 vr(XF[c % 2] + ((i % 2) * 2 + s) * 4, 4), vr(O + 16 * T, 16)))
        gaps = {g: [] for g in range(8)}
        rd = []
        if i + 1 < NQ:
            rd = rdW(i + 1)
        else:
            rd = rdK(0, KF)
        if i % 2 == 1 and (i + 1) // 2 < 10:
            rd = rdX((i + 1) // 2) + rd
        per = -(-len(rd) // 6)
        for n, r in enumerate(rd):
            gaps[n // per].append(r)
        dm = []
        if i % 2 == 0:
            if c + 2 < 10:
                dm += list(dmaX(c + 2))
            elif i == 16:
                dm += list(dmaK(0)) + list(dmaK(1))
            elif i == 18:
                dm += list(dmaK(2)) + list(dmaK(3))
        if i + 4 < NQ:
            dm += list(dmaW(i + 4))
        elif i - 16 < 3:
            dm += list(dmaV(i - 16))
        g = 0
        n = 0
        for t, tag in dm:
            gaps[min(g, 7)].append((t, tag))
            if tag is not None:
                g += 1
        if i == 17:
            for n, p in enumerate(pack_ops):
                gaps[2 + n // 2].append(p)
        if i == 18:
            k.I('v_lshlrev_b32 v%d, 4, v%d' % (vT0, L))
            for j in range(3):
                gaps[5 + j].append(('buffer_store_dwordx4 %s, v%d, %s, s%d offen offset:%d' % (
                    vr(Q + 4 * j, 4), vT0, sr(sWS, 4), sPk, 1024 * j), 'pkst'))
        sched(mf, gaps)
    k.mark('qp')
    k.wait_tag('K1')
    k.I('s_barrier')
    emit(rdK(1, VF))
    for T in range(4):
        for r in range(16):
            k.I('v_mul_f32 v%d, s%d, v%d' % (O + 16 * T + r, sC, O + 16 * T + r))
        for p in range(8):
            k.I('v_cvt_pk_bf16_f32 v%d, v%d, v%d' % (Q + 8 * T + p, O + 16 * T + 2 * p, O + 16 * T + 2 * p + 1))
    if cfg.get('dumpq'):
        k.I('s_lshl_b32 s%d, s%d, 5' % (sT0, sB))
        k.I('s_add_u32 s%d, s%d, s%d' % (sT0, sT0, sH))
        k.I('s_lshl_b32 s%d, s%d, 2' % (sT0, sT0))
        k.I('s_add_u32 s%d, s%d, s%d' % (sT0, sT0, sW))
        k.I('s_lshl_b32 s%d, s%d, 13' % (sT0, sT0))
        k.I('v_lshlrev_b32 v%d, 4, v%d' % (vT0, L))
        for s in range(8):
            k.I('buffer_store_dwordx4 %s, v%d, %s, s%d offen' % (vr(Q + 4 * s, 4), vT0, sr(sWS, 4), sT0))
            k.I('s_add_u32 s%d, s%d, 1024' % (sT0, sT0))
        k.wait(vm=0)
        k.I('s_endpgm')
    k.wait_tag('K2', lg=0)
    k.I('s_barrier')
    for r in range(64):
        k.I('v_mov_b32 v%d, 0' % (O + r))

    def qk(t, kf, c0):
        d = S[t % 2]
        return ['%s %s, %s, %s, %s' % (MF32, vr(d, 16), vr(kf + 4 * s, 4), vr(Q + 4 * s, 4),
                                       (c0 if s == 0 else vr(d, 16))) for s in range(8)]

    gaps = {g: [] for g in range(16)}
    dm = list(dmaK(4)) + list(dmaK(5))
    g = 0
    for t, tag in dm:
        gaps[g].append((t, tag))
        if tag is not None:
            g += 1
    for n, r in enumerate(rdK(2, KF)):
        gaps[8 + n // 2].append(r)
    sched(qk(0, KF, '0') + qk(1, VF, '0'), gaps)

    def maxtree(src, dst):
        k.I('v_max3_f32 v%d, v%d, v%d, v%d' % (dst, src, src + 1, src + 2))
        for r in range(3, 15, 2):
            k.I('v_max3_f32 v%d, v%d, v%d, v%d' % (dst, dst, src + r, src + r + 1))
        k.I('v_max_f32 v%d, v%d, v%d' % (dst, dst, src + 15))

    maxtree(S[0], vT0)
    k.I('v_mov_b32 v%d, v%d' % (vT1, vT0))
    k.I('v_permlane32_swap_b32 v%d, v%d' % (vT0, vT1))
    k.I('v_max_f32 v%d, v%d, v%d' % (vT0, vT0, vT1))
    for r in range(16):
        k.I('v_sub_f32 v%d, 0, v%d' % (NEGM + r, vT0))
    for r in range(16):
        k.I('v_sub_f32 v%d, v%d, v%d' % (S[0] + r, S[0] + r, vT0))
    for r in range(16):
        k.I('v_exp_f32 v%d, v%d' % (VF + r, S[0] + r))
    for r in range(16):
        k.I('v_sub_f32 v%d, v%d, v%d' % (S[1] + r, S[1] + r, vT0))
    k.I('v_add_f32 v%d, v%d, v%d' % (vL, VF, VF + 1))
    for r in range(2, 16):
        k.I('v_add_f32 v%d, v%d, v%d' % (vL, vL, VF + r))
    for p in range(8):
        k.I('v_cvt_pk_bf16_f32 v%d, v%d, v%d' % (P[0] + p, VF + 2 * p, VF + 2 * p + 1))

    NT = 16
    sites = []
    for t in range(NT):
        k.mark('at')
        need = ['V%d' % t]
        if t + 3 < NT:
            need.append('K%d' % (t + 3))
        k.wait_tag(*need, lg=0)
        k.I('s_barrier')
        mf = []
        if t + 2 < NT:
            mf += qk(t + 2, KF, vr(NEGM, 16))
        nq = len(mf)
        for s in range(2):
            for T in range(4):
                mf.append('%s %s, %s, %s, %s' % (MF32, vr(O + 16 * T, 16), vr(VF + (s * 4 + T) * 4, 4),
                                                 vr(P[t % 2] + 4 * s, 4), vr(O + 16 * T, 16)))
        ng = len(mf)
        gaps = {g: [] for g in range(ng)}
        rv = rdV(t)
        if nq:
            for n, r in enumerate(rv):
                gaps[n // 2].append(r)
        else:
            emit(rv)
        if t + 3 < NT:
            for n, r in enumerate(rdK(t + 3, KF)):
                gaps[4 + n].append(r)
        dm = []
        if t < 12:
            dm += list(dmaK(t + 6))
        if t + 3 < NT:
            dm += list(dmaV(t + 3))
        g = cfg['dmagap']
        for tx, tag in dm:
            gaps[g].append((tx, tag))
            if tag is not None:
                g += 1
        tail = []
        if t + 1 < NT:
            u = t + 1
            su, pu = S[u % 2], P[u % 2]
            sm = []
            for j in range(16):
                sm.append((j, 'v_exp_f32 v%d, v%d' % (TMP + j % 8, su + j)))
                if j == 1:
                    sm.append((j + 1, 'v_add_f32 v%d, v%d, v%d' % (vLs, TMP, TMP + 1)))
                elif j > 1:
                    sm.append((j + 1, 'v_add_f32 v%d, v%d, v%d' % (vLs, vLs, TMP + j % 8)))
                if j % 2 == 1:
                    sm.append((j + 1, 'v_cvt_pk_bf16_f32 v%d, v%d, v%d' % (pu + j // 2, TMP + (j - 1) % 8, TMP + j % 8)))
            sm.sort(key=lambda x: x[0])
            for pos, tx in sm:
                gp = pos * ng // 16
                if pos >= 16:
                    tail.append(tx)
                else:
                    gaps[gp].insert(0, (tx, None)) if False else gaps[gp].append((tx, None))
        sched(mf, gaps)
        if t + 1 < NT:
            for tx in tail:
                k.I(tx)
            site = (t % 4) if t < 12 else t
            k.I('v_cmp_nle_f32 vcc, v%d, v%d' % (vLs, vLs) if False else 'v_cmp_ngt_f32 vcc, s%d, v%d' % (sThr, vLs))
            k.I('s_cbranch_vccnz L_a_fb%d' % site)
            k.label('L_a_ret%d' % site)
            k.I('v_add_f32 v%d, v%d, v%d' % (vL, vL, vLs))
            if site not in [s for s, _ in sites]:
                sites.append((site, (t + 1) % 2))
    k.mark('at')
    k.I('v_mov_b32 v%d, v%d' % (vT1, vL))
    k.I('v_permlane32_swap_b32 v%d, v%d' % (vL, vT1))
    k.I('v_add_f32 v%d, v%d, v%d' % (vL, vL, vT1))
    k.I('v_rcp_f32 v%d, v%d' % (vL, vL))
    for T in range(4):
        for s in range(2):
            b = O + 16 * T + 8 * s
            d = KF + (T * 2 + s) * 4
            for r in range(8):
                k.I('v_mul_f32 v%d, v%d, v%d' % (b + r, vL, b + r))
            for p in range(4):
                k.I('v_cvt_pk_bf16_f32 v%d, v%d, v%d' % (d + p, b + 2 * p, b + 2 * p + 1))
            k.I('buffer_store_dwordx4 %s, v%d, %s, s%d offen offset:%d%s' % (vr(d, 4), vOo, sr(sWS, 4), sOo, 512 * s, cfg['omod']))
        if T < 3:
            k.I('s_add_u32 s%d, s%d, 4096' % (sOo, sOo))
    k.label('L_a_end')
    k.I('s_endpgm')
    k.fold('at', 0, 4, 3, 's%d' % sLoop)
    k.fold('qp', 0, 4, 4, 's%d' % sLoop)
    T = []
    for site, par in sites:
        T.append('L_a_fb%d:' % site)
        T.append('    s_mov_b32 s%d, %d' % (sRet, site))
        T.append('    s_branch L_a_fbp%d' % par)
    for par in range(2):
        f = Kern('fb')
        su, sn, pu = S[par], S[1 - par], P[par]
        f.label('L_a_fbp%d' % par)
        f.I('s_nop 15')
        f.I('v_max3_f32 v%d, v%d, v%d, v%d' % (vT0, su, su + 1, su + 2))
        for r in range(3, 15, 2):
            f.I('v_max3_f32 v%d, v%d, v%d, v%d' % (vT0, vT0, su + r, su + r + 1))
        f.I('v_max_f32 v%d, v%d, v%d' % (vT0, vT0, su + 15))
        f.I('v_mov_b32 v%d, v%d' % (vT1, vT0))
        f.I('v_permlane32_swap_b32 v%d, v%d' % (vT0, vT1))
        f.I('v_max3_f32 v%d, v%d, v%d, 0' % (vT0, vT0, vT1))
        f.I('v_sub_f32 v%d, 0, v%d' % (vT1, vT0))
        f.I('v_exp_f32 v%d, v%d' % (vT1, vT1))
        for r in range(16):
            f.I('v_sub_f32 v%d, v%d, v%d' % (NEGM + r, NEGM + r, vT0))
        for r in range(64):
            f.I('v_mul_f32 v%d, v%d, v%d' % (O + r, O + r, vT1))
        f.I('v_mul_f32 v%d, v%d, v%d' % (vL, vL, vT1))
        for r in range(16):
            f.I('v_sub_f32 v%d, v%d, v%d' % (su + r, su + r, vT0))
            f.I('v_sub_f32 v%d, v%d, v%d' % (sn + r, sn + r, vT0))
        f.I('v_mov_b32 v%d, 0' % vLs)
        for p in range(8):
            f.I('v_exp_f32 v%d, v%d' % (TMP, su + 2 * p))
            f.I('v_exp_f32 v%d, v%d' % (TMP + 1, su + 2 * p + 1))
            f.I('s_nop 0')
            f.I('v_add_f32 v%d, v%d, v%d' % (vLs, vLs, TMP))
            f.I('v_add_f32 v%d, v%d, v%d' % (vLs, vLs, TMP + 1))
            f.I('v_cvt_pk_bf16_f32 v%d, v%d, v%d' % (pu + p, TMP, TMP + 1))
        f.I('s_nop 3')
        mine = [s for s, p in sites if p == par]
        for s in mine[:-1]:
            f.I('s_cmp_eq_u32 s%d, %d' % (sRet, s))
            f.I('s_cbranch_scc1 L_a_ret%d' % s)
        f.I('s_branch L_a_ret%d' % mine[-1])
        T.append(f.text())
    k.tail = T
    return k


def gen_b(cfg):
    k = Kern('b')
    sO, sP, sOUT = 20, 24, 28
    sW, sQt, sNt, sT0, sT1, sOo, sPo, sLoop = 48, 49, 50, 51, 52, 53, 54, 55
    ACC = 0
    BUF = 80
    vOff, vOff2, vLane, vT0, vT1, vLw, vLr, vSt = 224, 225, 226, 227, 228, 229, 230, 231
    k.I('s_cmp_ge_u32 s2, 256')
    k.I('s_cbranch_scc1 L_b_end')
    k.I('s_load_dwordx16 s[4:19], s[0:1], 0')
    k.I('v_lshrrev_b32 v%d, 6, v0' % vT0)
    k.I('v_and_b32 v%d, 63, v0' % vLane)
    k.I('v_readfirstlane_b32 s%d, v%d' % (sW, vT0))
    k.I('s_and_b32 s%d, s2, 7' % sT0)
    k.I('s_lshr_b32 s%d, s2, 3' % sT1)
    k.I('s_lshr_b32 s%d, s%d, 1' % (sQt, sT0))
    k.I('s_lshl_b32 s%d, s%d, 3' % (sQt, sQt))
    k.I('s_and_b32 s%d, s%d, 7' % (sNt, sT1))
    k.I('s_add_u32 s%d, s%d, s%d' % (sQt, sQt, sNt))
    k.I('s_and_b32 s%d, s%d, 1' % (sNt, sT0))
    k.I('s_lshl_b32 s%d, s%d, 2' % (sNt, sNt))
    k.I('s_lshr_b32 s%d, s%d, 3' % (sT1, sT1))
    k.I('s_add_u32 s%d, s%d, s%d' % (sNt, sNt, sT1))
    k.I('v_lshlrev_b32 v%d, 4, v%d' % (vOff, vLane))
    k.I('v_add_u32 v%d, 0x1000, v%d' % (vOff2, vOff))
    k.I('s_lshl_b32 s%d, s%d, 12' % (sOo, sW))
    k.I('s_mul_i32 s%d, s%d, 5120' % (sPo, sW))
    k.wait(lg=0)
    k.I('s_lshl_b32 s%d, s%d, 19' % (sT0, sQt))
    srd(k, sO, 18, 19, 's%d' % sT0, 524288)
    k.I('s_mul_i32 s%d, s%d, 655360' % (sT0, sNt))
    k.I('s_add_u32 s%d, s%d, %d' % (sT0, sT0, WOP_OFF))
    srd(k, sP, 18, 19, 's%d' % sT0, 655360)
    srd(k, sOUT, 14, 15, None, 2048 * 1280)

    def loads(j):
        b = BUF + (j % 4) * 36
        out = []
        order = [('B', 0), ('A', 0), ('B', 1), ('B', 2), ('B', 3), ('A', 1), ('A', 2), ('A', 3), ('A', 4)]
        for kind, n in order:
            if kind == 'B':
                out.append('buffer_load_dwordx4 %s, v%d, %s, s%d offen offset:%d' % (vr(b + 20 + 4 * n, 4), vOff, sr(sO, 4), sOo, 1024 * n))
            elif n < 4:
                out.append('buffer_load_dwordx4 %s, v%d, %s, s%d offen offset:%d' % (vr(b + 4 * n, 4), vOff, sr(sP, 4), sPo, 1024 * n))
            else:
                out.append('buffer_load_dwordx4 %s, v%d, %s, s%d offen' % (vr(b + 4 * n, 4), vOff2, sr(sP, 4), sPo))
        out.append('s_add_u32 s%d, s%d, %d' % (sOo, sOo, 4 * 4096))
        out.append('s_add_u32 s%d, s%d, %d' % (sPo, sPo, 4 * 5120))
        return out
    for j in range(3):
        for t in loads(j):
            k.I(t)
    for r in range(80):
        k.I('v_mov_b32 v%d, 0' % (ACC + r))
    k.I('s_mul_i32 s%d, s%d, 20480' % (sT0, sW))
    k.I('v_add_u32 v%d, s%d, v%d' % (vLw, sT0, vOff))
    k.I('s_mul_i32 s%d, s%d, 5120' % (sT0, sW))
    k.I('v_add_u32 v%d, s%d, v%d' % (vLr, sT0, vOff))
    k.I('v_and_b32 v%d, 15, v%d' % (vT0, vLane))
    k.I('v_mul_u32_u24 v%d, 1280, v%d' % (vT0, vT0))
    k.I('v_lshrrev_b32 v%d, 4, v%d' % (vT1, vLane))
    k.I('v_lshl_add_u32 v%d, v%d, 3, v%d' % (vT0, vT1, vT0))
    k.I('s_lshl_b32 s%d, s%d, 2' % (sT0, sQt))
    k.I('s_add_u32 s%d, s%d, s%d' % (sT0, sT0, sW))
    k.I('s_mul_i32 s%d, s%d, %d' % (sT0, sT0, 16 * 1280))
    k.I('s_mul_i32 s%d, s%d, 160' % (sT1, sNt))
    k.I('s_add_u32 s%d, s%d, s%d' % (sT0, sT0, sT1))
    k.I('v_add_u32 v%d, s%d, v%d' % (vSt, sT0, vT0))
    for j in range(32):
        k.mark('mm')
        b = BUF + (j % 4) * 36
        ld = loads(j + 3)
        n_m = 0
        for n in range(5):
            for q in range(4):
                a = ACC + (n * 4 + q) * 4
                k.I('%s %s, %s, %s, %s' % (MF16, vr(a, 4), vr(b + 4 * n, 4), vr(b + 20 + 4 * q, 4), vr(a, 4)))
                if n_m % 2 == 0 and ld:
                    k.I(ld.pop(0))
                n_m += 1
        for t in ld:
            k.I(t)
    k.mark('mm')
    for q in range(4):
        for n in range(5):
            a = ACC + (n * 4 + q) * 4
            k.I('ds_write_b128 v%d, %s offset:%d' % (vLw, vr(a, 4), (q * 5 + n) * 1024))
    k.I('v_add_u32 v%d, 40960, v%d' % (vT1, vLr))
    k.wait(lg=0)
    k.I('s_barrier')
    for src in range(4):
        for n in range(5):
            k.I('ds_read_b128 %s, v%d offset:%d' % (vr(ACC + (src * 5 + n) * 4, 4), vLr if src < 2 else vT1, (src % 2) * 20480 + n * 1024))
    for n in range(5):
        for r in range(4):
            a = ACC + n * 4 + r
            k.I('v_add_f32 v%d, v%d, v%d' % (a, a, a + 20))
            k.I('v_add_f32 v%d, v%d, v%d' % (a + 40, a + 40, a + 60))
            k.I('v_add_f32 v%d, v%d, v%d' % (a, a, a + 40))
        a = ACC + n * 4
        k.I('v_cvt_pk_bf16_f32 v%d, v%d, v%d' % (a, a, a + 1))
        k.I('v_cvt_pk_bf16_f32 v%d, v%d, v%d' % (a + 1, a + 2, a + 3))
        k.I('buffer_store_dwordx2 %s, v%d, %s, 0 offen offset:%d' % (vr(a, 2), vSt, sr(sOUT, 4), 32 * n))
    k.label('L_b_end')
    k.I('s_endpgm')
    k.fold('mm', 0, 4, 8, 's%d' % sLoop)
    return k


HEAD = open('cdna_kernels/%s.s.ref' % NAME).read().split('; Override launch')[0]


def desc(name, vg=256):
    return '''.amdhsa_kernel %s
  .amdhsa_next_free_vgpr %d
  .amdhsa_next_free_sgpr 96
  .amdhsa_accum_offset %d
  .amdhsa_group_segment_fixed_size 0
  .amdhsa_kernarg_size 64
  .amdhsa_user_sgpr_count 2
  .amdhsa_user_sgpr_kernarg_segment_ptr 1
  .amdhsa_system_sgpr_workgroup_id_x 1
.end_amdhsa_kernel
''' % (name, vg, vg)


def build(cfg, path):
    a = gen_a(cfg)
    b = gen_b(cfg)
    a.report(); b.report()
    s = HEAD
    s += '; @launch kernel=%s grid=(512,1,1) block=(256,1,1) lds=%d\n' % (KA, LDS_A)
    if not cfg.get('only_a'):
        s += '; @launch kernel=%s grid=(256,1,1) block=(256,1,1) lds=81920\n' % KB
    s += '.amdgcn_target "amdgcn-amd-amdhsa--gfx950"\n.text\n'
    for nm, kk in ((KA, a), (KB, b)):
        s += '.globl %s\n.p2align 8\n.type %s,@function\n%s:\n' % (nm, nm, nm)
        s += kk.text()
    s += '.section .rodata,"a"\n.p2align 6\n' + desc(KA) + '.p2align 6\n' + desc(KB)
    open(path, 'w').write(s)


DEF = dict(kvmod='', omod='', touch=0, dmagap=8)
if __name__ == '__main__':
    cfg = dict(DEF)
    path = 'cdna_kernels/%s.s' % NAME
    for a in sys.argv[1:]:
        kx, v = a.split('=', 1)
        if kx == 'out':
            path = v
        else:
            cfg[kx] = int(v) if v.lstrip('-').isdigit() else v.replace('_', ' ')
    build(cfg, path)
```

```python
import sys
from asmlib import *

NAME = 'standalone__gqa_block_cached__near_ridge'
KA = NAME + '_kernel'
KB = 'gqa_outproj_kernel'

LDS_K = 1024
KSLOT = 8448
LDS_V = LDS_K + 4 * KSLOT
VSLOT = 8704
LDS_A = LDS_V + 4 * VSLOT
WOP_OFF = 16 * 1024 * 1024
CSCALE = 0x3e0293ee
import struct, math
CSCALE = struct.unpack('<I', struct.pack('<f', math.log2(math.e) / math.sqrt(128.0)))[0]
THR = struct.unpack('<I', struct.pack('<f', 16384.0))[0]


def vr(a, n):
    return 'v[%d:%d]' % (a, a + n - 1) if n > 1 else 'v%d' % a


def sr(a, n):
    return 's[%d:%d]' % (a, a + n - 1) if n > 1 else 's%d' % a


MF32 = 'v_mfma_f32_32x32x16_bf16'
MF16 = 'v_mfma_f32_16x16x32_bf16'


def srd(k, d, base_lo, base_hi, off_lo=None, nrec=0, off_hi=None):
    if off_lo is None:
        k.I('s_mov_b32 s%d, s%d' % (d, base_lo))
        k.I('s_mov_b32 s%d, s%d' % (d + 1, base_hi))
    else:
        k.I('s_add_u32 s%d, s%d, %s' % (d, base_lo, off_lo))
        k.I('s_addc_u32 s%d, s%d, 0' % (d + 1, base_hi))
    k.I('s_mov_b32 s%d, %s' % (d + 2, nrec))
    k.I('s_mov_b32 s%d, 0x20000' % (d + 3))


PROF_OFF = 128 * 1024 * 1024


def stamp(k, cfg, n):
    if cfg.get('prof'):
        k.I('s_memrealtime s[%d:%d]' % (70 + 2 * n, 71 + 2 * n))


def prof_out(k, cfg, sW, nst, region, vA, vB):
    if not cfg.get('prof'):
        return
    k.wait(vm=0)
    stamp(k, cfg, nst - 1)
    k.I('s_getreg_b32 s68, hwreg(HW_REG_HW_ID)')
    k.I('s_getreg_b32 s69, hwreg(HW_REG_XCC_ID)')
    k.I('s_add_u32 s44, s18, %d' % (PROF_OFF + region * 1048576))
    k.I('s_addc_u32 s45, s19, 0')
    k.I('s_mov_b32 s46, 1048576')
    k.I('s_mov_b32 s47, 0x20000')
    k.I('s_lshl_b32 s67, s2, 2')
    k.I('s_add_u32 s67, s67, s%d' % sW)
    k.I('s_lshl_b32 s67, s67, 6')
    k.I('s_waitcnt lgkmcnt(0)')
    k.I('v_mov_b32 v%d, 0' % vA)
    k.I('s_mov_b64 exec, 1')
    lst = [68, 69] + [70 + 2 * n for n in range(nst)]
    for i, r in enumerate(lst):
        k.I('v_mov_b32 v%d, s%d' % (vB + i, r))
        k.I('buffer_store_dword v%d, v%d, s[44:47], s67 offen offset:%d' % (vB + i, vA, 4 * i))


def gen_a(cfg):
    k = Kern('a')
    sX, sK, sV, sWQ, sWO, sWS = 20, 24, 28, 32, 36, 40
    sW, sB, sH, sT0, sT1, sT2 = 48, 49, 50, 51, 52, 53
    sMK, sMV, sMX = 54, 55, 56
    sWo, sXo, sKo, sVo = 57, 58, 59, 60
    sLoop, sRet, sThr, sC, sPk, sOo = 61, 62, 63, 64, 65, 66
    O, Q, NEGM, S0, P0, KF, VF, TMP = 0, 64, 96, 112, 144, 160, 192, 224
    S = [S0, S0 + 16]
    P = [P0, P0 + 8]
    vL, vLs, vKra, vVra, vKdo, vVdo = 232, 233, 234, 235, 236, 237
    vWra, vXra, vWd0, vWd1, vXdo, vLane = 238, 239, 240, 241, 242, 243
    vT0, vT1, vT2, vT3, vPk0, vPk1, vOo = 244, 245, 246, 247, 248, 249, 250
    WF = [KF, VF]
    XF = [S0, S0 + 16]
    PKT = list(range(NEGM, NEGM + 16)) + list(range(P0, P0 + 16))

    k.I('s_cmp_ge_u32 s2, 512')
    k.I('s_cbranch_scc1 L_a_end')
    stamp(k, cfg, 0)
    k.I('s_load_dwordx16 s[4:19], s[0:1], 0')
    k.I('v_lshrrev_b32 v%d, 6, v0' % vT0)
    k.I('v_and_b32 v%d, 63, v0' % vLane)
    k.I('v_readfirstlane_b32 s%d, v%d' % (sW, vT0))
    k.I('s_and_b32 s%d, s2, 7' % sT0)
    k.I('s_lshr_b32 s%d, s2, 3' % sT1)
    k.I('s_and_b32 s%d, s%d, 1' % (sB, sT0))
    k.I('s_lshl_b32 s%d, s%d, 3' % (sB, sB))
    k.I('s_and_b32 s%d, s%d, 7' % (sT2, sT1))
    k.I('s_add_u32 s%d, s%d, s%d' % (sB, sB, sT2))
    k.I('s_lshr_b32 s%d, s%d, 1' % (sH, sT0))
    k.I('s_lshl_b32 s%d, s%d, 3' % (sH, sH))
    k.I('s_lshr_b32 s%d, s%d, 3' % (sT2, sT1))
    k.I('s_add_u32 s%d, s%d, s%d' % (sH, sH, sT2))
    L = vLane
    k.I('v_lshrrev_b32 v%d, 4, v%d' % (vT0, L))
    k.I('v_lshlrev_b32 v%d, 3, v%d' % (vT1, vT0))
    k.I('s_lshl_b32 s%d, s%d, 1' % (sT0, sW))
    k.I('v_add_u32 v%d, s%d, v%d' % (vT1, sT0, vT1))
    k.I('v_and_b32 v%d, 15, v%d' % (vT2, L))
    k.I('v_lshlrev_b32 v%d, 4, v%d' % (vT3, vT2))
    k.I('v_lshl_add_u32 v%d, v%d, 13, v%d' % (vWd0, vT1, vT3))
    k.I('v_add_u32 v%d, 0x2000, v%d' % (vWd1, vWd0))
    k.I('v_lshl_add_u32 v%d, v%d, 8, v%d' % (vVdo, vT1, vT3))
    k.I('v_and_b32 v%d, 1, v%d' % (vT0, vT0))
    k.I('v_xor_b32 v%d, v%d, v%d' % (vT2, vT2, vT0))
    k.I('v_lshlrev_b32 v%d, 4, v%d' % (vT3, vT2))
    k.I('v_lshl_add_u32 v%d, v%d, 8, v%d' % (vKdo, vT1, vT3))
    k.I('v_bfe_u32 v%d, v%d, 4, 1' % (vT0, L))
    k.I('v_bfe_u32 v%d, v%d, 3, 1' % (vT1, L))
    k.I('v_lshrrev_b32 v%d, 5, v%d' % (vT2, L))
    k.I('v_lshlrev_b32 v%d, 2, v%d' % (vT3, vT0))
    k.I('v_lshl_add_u32 v%d, v%d, 3, v%d' % (vT3, vT1, vT3))
    k.I('v_lshl_add_u32 v%d, v%d, 4, v%d' % (vT3, vT2, vT3))
    k.I('s_lshl_b32 s%d, s%d, 5' % (sT0, sW))
    k.I('v_add_u32 v%d, s%d, v%d' % (vT3, sT0, vT3))
    k.I('v_mul_u32_u24 v%d, 0x500, v%d' % (vT3, vT3))
    k.I('v_and_b32 v%d, 7, v%d' % (vT1, L))
    k.I('v_xor_b32 v%d, v%d, v%d' % (vT1, vT1, vT0))
    k.I('v_lshl_add_u32 v%d, v%d, 4, v%d' % (vXdo, vT1, vT3))
    k.I('s_mul_i32 s%d, s%d, %d' % (sMK, sW, 2 * 1056))
    k.I('s_add_u32 s%d, s%d, %d' % (sMK, sMK, LDS_K))
    k.I('s_mul_i32 s%d, s%d, %d' % (sMV, sW, 2 * 1088))
    k.I('s_add_u32 s%d, s%d, %d' % (sMV, sMV, LDS_V))
    k.I('s_mul_i32 s%d, s%d, %d' % (sMX, sW, 4224))
    k.I('s_add_u32 s%d, s%d, %d' % (sMX, sMX, LDS_K))
    k.wait(lg=0)
    k.I('s_mul_i32 s%d, s%d, %d' % (sT0, sB, 163840))
    srd(k, sX, 4, 5, 's%d' % sT0, 163840)
    k.I('s_lshl_b32 s%d, s%d, 8' % (sT0, sH))
    srd(k, sWQ, 10, 11, 's%d' % sT0, 0)
    k.I('s_sub_u32 s%d, %d, s%d' % (sWQ + 2, 640 * 8192, sT0))
    k.I('s_mov_b32 s%d, 0' % sWo)
    k.I('s_mov_b32 s%d, 0' % sXo)

    def dmaW(i):
        slot = i % 4
        for j in range(2):
            yield ('s_add_u32 m0, s%d, %d' % (sMV, slot * VSLOT + j * 1088), None)
            yield ('buffer_load_dwordx4 v%d, %s, s%d offen lds' % ([vWd0, vWd1][j], sr(sWQ, 4), sWo), 'W%d' % i)
        yield ('s_add_u32 s%d, s%d, %d' % (sWo, sWo, 32 * 8192), None)

    def dmaX(c):
        par = c % 2
        for j in range(4):
            yield ('s_add_u32 m0, s%d, %d' % (sMX, par * 16896 + j * 1056 - j * 1280), None) if (par or True) else None
            off = ' offset:%d' % (j * 1280) if j else ''
            yield ('buffer_load_dwordx4 v%d, %s, s%d offen%s lds' % (vXdo, sr(sX, 4), sXo, off), 'X%d' % c)
        yield ('s_add_u32 s%d, s%d, 128' % (sXo, sXo), None)

    def dmaK(t):
        slot = t % 4
        for j in range(2):
            yield ('s_add_u32 m0, s%d, %d' % (sMK, slot * KSLOT + j * (1056 - 256)), None)
            off = ' offset:256' if j else ''
            yield ('buffer_load_dwordx4 v%d, %s, s%d offen%s lds%s' % (vKdo, sr(sK, 4), sKo, off, cfg['kvmod']), 'K%d' % t)
        yield ('s_add_u32 s%d, s%d, 8192' % (sKo, sKo), None)

    def dmaV(t):
        slot = t % 4
        for j in range(2):
            yield ('s_add_u32 m0, s%d, %d' % (sMV, slot * VSLOT + j * (1088 - 256)), None)
            off = ' offset:256' if j else ''
            yield ('buffer_load_dwordx4 v%d, %s, s%d offen%s lds%s' % (vVdo, sr(sV, 4), sVo, off, cfg['kvmod']), 'V%d' % t)
        yield ('s_add_u32 s%d, s%d, 8192' % (sVo, sVo), None)

    def emit(g):
        for t, tag in g:
            k.I(t, tag)

    emit(dmaW(0)); emit(dmaX(0)); emit(dmaW(1)); emit(dmaX(1)); emit(dmaW(2)); emit(dmaW(3))
    k.I('s_lshl_b32 s%d, s%d, 5' % (sT0, sB))
    k.I('s_add_u32 s%d, s%d, s%d' % (sT0, sT0, sH))
    k.I('s_lshl_b32 s%d, s%d, 17' % (sT0, sT0))
    srd(k, sK, 6, 7, 's%d' % sT0, 131072)
    srd(k, sV, 8, 9, 's%d' % sT0, 131072)
    srd(k, sWO, 12, 13, None, 4096 * 1280)
    srd(k, sWS, 18, 19, None, WOP_OFF + 5242880)
    k.I('s_mov_b32 s%d, 0' % sKo)
    k.I('s_mov_b32 s%d, 0' % sVo)
    k.I('s_mov_b32 s%d, 0x%x' % (sThr, THR))
    k.I('s_mov_b32 s%d, 0x%x' % (sC, CSCALE))
    if cfg['touch']:
        k.I('v_lshlrev_b32 v%d, 7, v%d' % (vT0, L))
        k.I('s_lshl_b32 s%d, s%d, 13' % (sT0, sW))
        for j in range(cfg['touch']):
            k.I('buffer_load_dword v%d, v%d, %s, s%d offen' % (Q + 2 * j, vT0, sr(sK, 4), sT0), 'touch')
            k.I('buffer_load_dword v%d, v%d, %s, s%d offen' % (Q + 2 * j + 1, vT0, sr(sV, 4), sT0), 'touch')
            k.I('s_add_u32 s%d, s%d, 32768' % (sT0, sT0))
    k.I('s_lshl_b32 s%d, s2, 1' % sT0)
    k.I('s_lshr_b32 s%d, s%d, 1' % (sT1, sW))
    k.I('s_add_u32 s%d, s%d, s%d' % (sT0, sT0, sT1))
    k.I('s_and_b32 s%d, s%d, 1' % (sT1, sW))
    k.I('s_lshl_b32 s%d, s%d, 1' % (sT1, sT1))
    k.I('s_mul_i32 s%d, s%d, 5' % (sPk, sT0))
    k.I('s_add_u32 s%d, s%d, s%d' % (sPk, sPk, sT1))
    k.I('s_lshl_b32 s%d, s%d, 10' % (sPk, sPk))
    k.I('s_add_u32 s%d, s%d, %d' % (sPk, sPk, WOP_OFF))
    k.I('s_lshr_b32 s%d, s%d, 7' % (sT2, sT0))
    k.I('s_mul_i32 s%d, s%d, 160' % (sT2, sT2))
    k.I('s_lshl_b32 s%d, s%d, 5' % (sT1, sT1))
    k.I('s_add_u32 s%d, s%d, s%d' % (sT2, sT2, sT1))
    k.I('s_and_b32 s%d, s%d, 127' % (sT0, sT0))
    k.I('s_mul_i32 s%d, s%d, %d' % (sT0, sT0, 32 * 1280))
    k.I('s_add_u32 s%d, s%d, s%d' % (sT2, sT2, sT0))
    k.I('v_lshrrev_b32 v%d, 4, v%d' % (vT0, L))
    k.I('v_mul_u32_u24 v%d, %d, v%d' % (vT0, 8 * 1280, vT0))
    k.I('v_and_b32 v%d, 15, v%d' % (vT1, L))
    k.I('v_lshl_add_u32 v%d, v%d, 1, v%d' % (vPk0, vT1, vT0))
    k.I('v_add_u32 v%d, %d, v%d' % (vPk1, 4 * 1280, vPk0))
    for j in range(3):
        for i in range(8):
            off = (i % 4) * 1280 + 32 * j
            k.I('buffer_load_ushort v%d, v%d, %s, s%d offen offset:%d' % (
                PKT[j * 8 + i], [vPk0, vPk1][i // 4], sr(sWO, 4), sT2, off), 'pk')
    k.I('v_and_b32 v%d, 7, v%d' % (vT0, L))
    k.I('v_mul_u32_u24 v%d, 1056, v%d' % (vT0, vT0))
    k.I('v_bfe_u32 v%d, v%d, 3, 2' % (vT1, L))
    k.I('v_lshl_add_u32 v%d, v%d, 8, v%d' % (vT0, vT1, vT0))
    k.I('v_lshrrev_b32 v%d, 5, v%d' % (vT2, L))
    k.I('v_and_b32 v%d, 1, v%d' % (vT1, vT1))
    k.I('v_xor_b32 v%d, v%d, v%d' % (vT1, vT1, vT2))
    k.I('v_lshl_add_u32 v%d, v%d, 4, v%d' % (vT0, vT1, vT0))
    k.I('v_add_u32 v%d, %d, v%d' % (vKra, LDS_K, vT0))
    k.I('v_bfe_u32 v%d, v%d, 4, 1' % (vT0, L))
    k.I('v_lshlrev_b32 v%d, 5, v%d' % (vT0, vT0))
    k.I('v_and_b32 v%d, 1, v%d' % (vT1, L))
    k.I('v_lshl_add_u32 v%d, v%d, 4, v%d' % (vT0, vT1, vT0))
    k.I('v_bfe_u32 v%d, v%d, 1, 1' % (vT1, L))
    k.I('v_lshl_add_u32 v%d, v%d, 3, v%d' % (vT0, vT1, vT0))
    k.I('v_bfe_u32 v%d, v%d, 2, 2' % (vT1, L))
    k.I('v_mul_u32_u24 v%d, 1088, v%d' % (vT1, vT1))
    k.I('v_add3_u32 v%d, v%d, v%d, v%d' % (vT0, vT0, vT1, vT1))
    k.I('v_sub_u32 v%d, v%d, v%d' % (vT0, vT0, vT1))
    k.I('v_add_u32 v%d, %d, v%d' % (vT0, LDS_V, vT0))
    k.I('v_lshl_add_u32 v%d, v%d, 8, v%d' % (vWra, vT2, vT0))
    k.I('v_mul_u32_u24 v%d, %d, v%d' % (vT1, 4 * 1088, vT2))
    k.I('v_add_u32 v%d, v%d, v%d' % (vVra, vT0, vT1))
    k.I('v_and_b32 v%d, 3, v%d' % (vT0, L))
    k.I('v_mul_u32_u24 v%d, 1056, v%d' % (vT0, vT0))
    k.I('v_bfe_u32 v%d, v%d, 3, 1' % (vT1, L))
    k.I('v_lshl_add_u32 v%d, v%d, 7, v%d' % (vT0, vT1, vT0))
    k.I('v_bfe_u32 v%d, v%d, 4, 1' % (vT1, L))
    k.I('v_lshl_add_u32 v%d, v%d, 9, v%d' % (vT0, vT1, vT0))
    k.I('v_bfe_u32 v%d, v%d, 2, 1' % (vT1, L))
    k.I('v_lshl_add_u32 v%d, v%d, 8, v%d' % (vT0, vT1, vT0))
    k.I('v_xor_b32 v%d, v%d, v%d' % (vT1, vT1, vT2))
    k.I('v_lshl_add_u32 v%d, v%d, 4, v%d' % (vT0, vT1, vT0))
    k.I('v_add_u32 v%d, s%d, v%d' % (vXra, sMX, vT0))
    k.I('v_bfe_u32 v%d, v%d, 4, 1' % (vT0, L))
    k.I('v_lshlrev_b32 v%d, 10, v%d' % (vT0, vT0))
    k.I('v_and_b32 v%d, 15, v%d' % (vT1, L))
    k.I('v_lshl_add_u32 v%d, v%d, 4, v%d' % (vT0, vT1, vT0))
    k.I('v_lshl_add_u32 v%d, v%d, 8, v%d' % (vOo, vT2, vT0))
    k.I('s_lshl_b32 s%d, s%d, 1' % (sOo, sB))
    k.I('s_lshr_b32 s%d, s%d, 1' % (sT0, sW))
    k.I('s_add_u32 s%d, s%d, s%d' % (sOo, sOo, sT0))
    k.I('s_lshl_b32 s%d, s%d, 19' % (sOo, sOo))
    k.I('s_lshl_b32 s%d, s%d, 14' % (sT0, sH))
    k.I('s_add_u32 s%d, s%d, s%d' % (sOo, sOo, sT0))
    k.I('s_and_b32 s%d, s%d, 1' % (sT0, sW))
    k.I('s_lshl_b32 s%d, s%d, 11' % (sT0, sT0))
    k.I('s_add_u32 s%d, s%d, s%d' % (sOo, sOo, sT0))
    for r in range(64):
        k.I('v_mov_b32 v%d, 0' % (O + r))

    def rdW(i):
        out = []
        for s in range(2):
            for T in range(4):
                for e in range(2):
                    d = WF[i % 2] + (s * 4 + T) * 4 + 2 * e
                    out.append(('ds_read_b64_tr_b16 %s, v%d offset:%d' % (
                        vr(d, 2), vWra, (i % 4) * VSLOT + e * 4352 + s * 512 + T * 64), None))
        return out

    def rdX(c):
        return [('ds_read_b128 %s, v%d offset:%d' % (vr(XF[c % 2] + 4 * s, 4), vXra, (c % 2) * 16896 + 32 * s), None)
                for s in range(4)]

    def rdK(t, dst):
        return [('ds_read_b128 %s, v%d offset:%d' % (vr(dst + 4 * s, 4), vKra, (t % 4) * KSLOT + 32 * s), None)
                for s in range(8)]

    def rdV(t):
        out = []
        for s in range(2):
            for T in range(4):
                for e in range(2):
                    d = VF + (s * 4 + T) * 4 + 2 * e
                    out.append(('ds_read_b64_tr_b16 %s, v%d offset:%d' % (
                        vr(d, 2), vVra, (t % 4) * VSLOT + (2 * s + e) * 256 + T * 64), None))
        return out

    def sched(mf, gaps):
        for g, m in enumerate(mf):
            k.I(m)
            for t, tag in gaps.get(g, []):
                k.I(t, tag)

    stamp(k, cfg, 1)
    k.wait_tag('W0', 'X0')
    k.I('s_barrier')
    stamp(k, cfg, 2)
    emit(rdX(0)); emit(rdW(0))
    NQ = 20
    pack_ops = []
    for j in range(3):
        for p in range(4):
            pack_ops.append(('v_lshl_or_b32 v%d, v%d, 16, v%d' % (Q + 4 * j + p, PKT[j * 8 + 2 * p + 1], PKT[j * 8 + 2 * p]), None))
    for i in range(NQ):
        k.mark('qp')
        need = []
        if i + 1 < NQ:
            need.append('W%d' % (i + 1))
        if i % 2 == 1 and (i + 1) // 2 < 10:
            need.append('X%d' % ((i + 1) // 2))
        if i == 19:
            need.append('K0')
        k.wait_tag(*need, lg=0)
        k.I('s_barrier')
        c = i // 2
        mf = []
        for s in range(2):
            for T in range(4):
                mf.append('%s %s, %s, %s, %s' % (MF32, vr(O + 16 * T, 16), vr(WF[i % 2] + (s * 4 + T) * 4, 4),
                                                 vr(XF[c % 2] + ((i % 2) * 2 + s) * 4, 4), vr(O + 16 * T, 16)))
        gaps = {g: [] for g in range(8)}
        rd = []
        if i + 1 < NQ:
            rd = rdW(i + 1)
        else:
            rd = rdK(0, KF)
        if i % 2 == 1 and (i + 1) // 2 < 10:
            rd = rdX((i + 1) // 2) + rd
        per = -(-len(rd) // 6)
        for n, r in enumerate(rd):
            gaps[n // per].append(r)
        dm = []
        if i % 2 == 0:
            if c + 2 < 10:
                dm += list(dmaX(c + 2))
            elif i == 16:
                dm += list(dmaK(0)) + list(dmaK(1))
            elif i == 18:
                dm += list(dmaK(2)) + list(dmaK(3))
        if i + 4 < NQ:
            dm += list(dmaW(i + 4))
        elif i - 16 < 3:
            dm += list(dmaV(i - 16))
        g = 0
        n = 0
        for t, tag in dm:
            gaps[min(g, 7)].append((t, tag))
            if tag is not None:
                g += 1
        if i == 17:
            for n, p in enumerate(pack_ops):
                gaps[2 + n // 2].append(p)
        if i == 18:
            k.I('v_lshlrev_b32 v%d, 4, v%d' % (vT0, L))
            for j in range(3):
                gaps[5 + j].append(('buffer_store_dwordx4 %s, v%d, %s, s%d offen offset:%d' % (
                    vr(Q + 4 * j, 4), vT0, sr(sWS, 4), sPk, 1024 * j), 'pkst'))
        sched(mf, gaps)
    k.mark('qp')
    stamp(k, cfg, 3)
    k.wait_tag('K1')
    k.I('s_barrier')
    emit(rdK(1, VF))
    for T in range(4):
        for r in range(16):
            k.I('v_mul_f32 v%d, s%d, v%d' % (O + 16 * T + r, sC, O + 16 * T + r))
        for p in range(8):
            k.I('v_cvt_pk_bf16_f32 v%d, v%d, v%d' % (Q + 8 * T + p, O + 16 * T + 2 * p, O + 16 * T + 2 * p + 1))
    if cfg.get('dumpq'):
        k.I('s_lshl_b32 s%d, s%d, 5' % (sT0, sB))
        k.I('s_add_u32 s%d, s%d, s%d' % (sT0, sT0, sH))
        k.I('s_lshl_b32 s%d, s%d, 2' % (sT0, sT0))
        k.I('s_add_u32 s%d, s%d, s%d' % (sT0, sT0, sW))
        k.I('s_lshl_b32 s%d, s%d, 13' % (sT0, sT0))
        k.I('v_lshlrev_b32 v%d, 4, v%d' % (vT0, L))
        for s in range(8):
            k.I('buffer_store_dwordx4 %s, v%d, %s, s%d offen' % (vr(Q + 4 * s, 4), vT0, sr(sWS, 4), sT0))
            k.I('s_add_u32 s%d, s%d, 1024' % (sT0, sT0))
        k.wait(vm=0)
        k.I('s_endpgm')
    k.wait_tag('K2', lg=0)
    k.I('s_barrier')
    for r in range(64):
        k.I('v_mov_b32 v%d, 0' % (O + r))

    def qk(t, kf, c0):
        d = S[t % 2]
        return ['%s %s, %s, %s, %s' % (MF32, vr(d, 16), vr(kf + 4 * s, 4), vr(Q + 4 * s, 4),
                                       (c0 if s == 0 else vr(d, 16))) for s in range(8)]

    gaps = {g: [] for g in range(16)}
    dm = list(dmaK(4)) + list(dmaK(5))
    g = 0
    for t, tag in dm:
        gaps[g].append((t, tag))
        if tag is not None:
            g += 1
    for n, r in enumerate(rdK(2, KF)):
        gaps[8 + n // 2].append(r)
    sched(qk(0, KF, '0') + qk(1, VF, '0'), gaps)

    def maxtree(src, dst):
        k.I('v_max3_f32 v%d, v%d, v%d, v%d' % (dst, src, src + 1, src + 2))
        for r in range(3, 15, 2):
            k.I('v_max3_f32 v%d, v%d, v%d, v%d' % (dst, dst, src + r, src + r + 1))
        k.I('v_max_f32 v%d, v%d, v%d' % (dst, dst, src + 15))

    maxtree(S[0], vT0)
    k.I('v_mov_b32 v%d, v%d' % (vT1, vT0))
    k.I('v_permlane32_swap_b32 v%d, v%d' % (vT0, vT1))
    k.I('v_max_f32 v%d, v%d, v%d' % (vT0, vT0, vT1))
    for r in range(16):
        k.I('v_sub_f32 v%d, 0, v%d' % (NEGM + r, vT0))
    for r in range(16):
        k.I('v_sub_f32 v%d, v%d, v%d' % (S[0] + r, S[0] + r, vT0))
    for r in range(16):
        k.I('v_exp_f32 v%d, v%d' % (VF + r, S[0] + r))
    for r in range(16):
        k.I('v_sub_f32 v%d, v%d, v%d' % (S[1] + r, S[1] + r, vT0))
    k.I('v_add_f32 v%d, v%d, v%d' % (vL, VF, VF + 1))
    for r in range(2, 16):
        k.I('v_add_f32 v%d, v%d, v%d' % (vL, vL, VF + r))
    for p in range(8):
        k.I('v_cvt_pk_bf16_f32 v%d, v%d, v%d' % (P[0] + p, VF + 2 * p, VF + 2 * p + 1))

    NT = 16
    sites = []
    stamp(k, cfg, 4)
    for t in range(NT):
        k.mark('at')
        need = ['V%d' % t]
        if t + 3 < NT:
            need.append('K%d' % (t + 3))
        k.wait_tag(*need, lg=0)
        k.I('s_barrier')
        mf = []
        if t + 2 < NT:
            mf += qk(t + 2, KF, vr(NEGM, 16))
        nq = len(mf)
        for s in range(2):
            for T in range(4):
                mf.append('%s %s, %s, %s, %s' % (MF32, vr(O + 16 * T, 16), vr(VF + (s * 4 + T) * 4, 4),
                                                 vr(P[t % 2] + 4 * s, 4), vr(O + 16 * T, 16)))
        ng = len(mf)
        gaps = {g: [] for g in range(ng)}
        rv = rdV(t)
        if nq:
            for n, r in enumerate(rv):
                gaps[n // 2].append(r)
        else:
            emit(rv)
        if t + 3 < NT:
            for n, r in enumerate(rdK(t + 3, KF)):
                gaps[4 + n].append(r)
        dm = []
        if t < 12:
            dm += list(dmaK(t + 6))
        if t + 3 < NT:
            dm += list(dmaV(t + 3))
        g = cfg['dmagap']
        for tx, tag in dm:
            gaps[g].append((tx, tag))
            if tag is not None:
                g += 1
        tail = []
        if t + 1 < NT:
            u = t + 1
            su, pu = S[u % 2], P[u % 2]
            sm = []
            for j in range(16):
                sm.append((j, 'v_exp_f32 v%d, v%d' % (TMP + j % 8, su + j)))
                if j == 1:
                    sm.append((j + 1, 'v_add_f32 v%d, v%d, v%d' % (vLs, TMP, TMP + 1)))
                elif j > 1:
                    sm.append((j + 1, 'v_add_f32 v%d, v%d, v%d' % (vLs, vLs, TMP + j % 8)))
                if j % 2 == 1:
                    sm.append((j + 1, 'v_cvt_pk_bf16_f32 v%d, v%d, v%d' % (pu + j // 2, TMP + (j - 1) % 8, TMP + j % 8)))
            sm.sort(key=lambda x: x[0])
            for pos, tx in sm:
                gp = pos * ng // 16
                if pos >= 16:
                    tail.append(tx)
                else:
                    gaps[gp].insert(0, (tx, None)) if False else gaps[gp].append((tx, None))
        sched(mf, gaps)
        if t + 1 < NT:
            for tx in tail:
                k.I(tx)
            site = (t % 4) if t < 12 else t
            k.I('v_cmp_nle_f32 vcc, v%d, v%d' % (vLs, vLs) if False else 'v_cmp_ngt_f32 vcc, s%d, v%d' % (sThr, vLs))
            k.I('s_cbranch_vccnz L_a_fb%d' % site)
            k.label('L_a_ret%d' % site)
            k.I('v_add_f32 v%d, v%d, v%d' % (vL, vL, vLs))
            if site not in [s for s, _ in sites]:
                sites.append((site, (t + 1) % 2))
    k.mark('at')
    stamp(k, cfg, 5)
    k.I('v_mov_b32 v%d, v%d' % (vT1, vL))
    k.I('v_permlane32_swap_b32 v%d, v%d' % (vL, vT1))
    k.I('v_add_f32 v%d, v%d, v%d' % (vL, vL, vT1))
    k.I('v_rcp_f32 v%d, v%d' % (vL, vL))
    for T in range(4):
        for s in range(2):
            b = O + 16 * T + 8 * s
            d = KF + (T * 2 + s) * 4
            for r in range(8):
                k.I('v_mul_f32 v%d, v%d, v%d' % (b + r, vL, b + r))
            for p in range(4):
                k.I('v_cvt_pk_bf16_f32 v%d, v%d, v%d' % (d + p, b + 2 * p, b + 2 * p + 1))
            k.I('buffer_store_dwordx4 %s, v%d, %s, s%d offen offset:%d%s' % (vr(d, 4), vOo, sr(sWS, 4), sOo, 512 * s, cfg['omod']))
        if T < 3:
            k.I('s_add_u32 s%d, s%d, 4096' % (sOo, sOo))
    stamp(k, cfg, 6)
    prof_out(k, cfg, sW, 8, 0, 0, 1)
    k.label('L_a_end')
    k.I('s_endpgm')
    k.fold('at', 0, 4, 3, 's%d' % sLoop)
    k.fold('qp', 0, 4, 4, 's%d' % sLoop)
    T = []
    for site, par in sites:
        T.append('L_a_fb%d:' % site)
        T.append('    s_mov_b32 s%d, %d' % (sRet, site))
        T.append('    s_branch L_a_fbp%d' % par)
    for par in range(2):
        f = Kern('fb')
        su, sn, pu = S[par], S[1 - par], P[par]
        f.label('L_a_fbp%d' % par)
        f.I('s_nop 15')
        f.I('v_max3_f32 v%d, v%d, v%d, v%d' % (vT0, su, su + 1, su + 2))
        for r in range(3, 15, 2):
            f.I('v_max3_f32 v%d, v%d, v%d, v%d' % (vT0, vT0, su + r, su + r + 1))
        f.I('v_max_f32 v%d, v%d, v%d' % (vT0, vT0, su + 15))
        f.I('v_mov_b32 v%d, v%d' % (vT1, vT0))
        f.I('v_permlane32_swap_b32 v%d, v%d' % (vT0, vT1))
        f.I('v_max3_f32 v%d, v%d, v%d, 0' % (vT0, vT0, vT1))
        f.I('v_sub_f32 v%d, 0, v%d' % (vT1, vT0))
        f.I('v_exp_f32 v%d, v%d' % (vT1, vT1))
        for r in range(16):
            f.I('v_sub_f32 v%d, v%d, v%d' % (NEGM + r, NEGM + r, vT0))
        for r in range(64):
            f.I('v_mul_f32 v%d, v%d, v%d' % (O + r, O + r, vT1))
        f.I('v_mul_f32 v%d, v%d, v%d' % (vL, vL, vT1))
        for r in range(16):
            f.I('v_sub_f32 v%d, v%d, v%d' % (su + r, su + r, vT0))
            f.I('v_sub_f32 v%d, v%d, v%d' % (sn + r, sn + r, vT0))
        f.I('v_mov_b32 v%d, 0' % vLs)
        for p in range(8):
            f.I('v_exp_f32 v%d, v%d' % (TMP, su + 2 * p))
            f.I('v_exp_f32 v%d, v%d' % (TMP + 1, su + 2 * p + 1))
            f.I('s_nop 0')
            f.I('v_add_f32 v%d, v%d, v%d' % (vLs, vLs, TMP))
            f.I('v_add_f32 v%d, v%d, v%d' % (vLs, vLs, TMP + 1))
            f.I('v_cvt_pk_bf16_f32 v%d, v%d, v%d' % (pu + p, TMP, TMP + 1))
        f.I('s_nop 3')
        mine = [s for s, p in sites if p == par]
        for s in mine[:-1]:
            f.I('s_cmp_eq_u32 s%d, %d' % (sRet, s))
            f.I('s_cbranch_scc1 L_a_ret%d' % s)
        f.I('s_branch L_a_ret%d' % mine[-1])
        T.append(f.text())
    k.tail = T
    return k


def gen_b(cfg):
    k = Kern('b')
    sO, sP, sOUT = 20, 24, 28
    sW, sQt, sNt, sT0, sT1, sOo, sPo, sLoop = 48, 49, 50, 51, 52, 53, 54, 55
    ACC = 0
    BUF = 80
    vOff, vOff2, vLane, vT0, vT1, vLw, vLr, vSt = 224, 225, 226, 227, 228, 229, 230, 231
    k.I('s_cmp_ge_u32 s2, 256')
    k.I('s_cbranch_scc1 L_b_end')
    stamp(k, cfg, 0)
    k.I('s_load_dwordx16 s[4:19], s[0:1], 0')
    k.I('v_lshrrev_b32 v%d, 6, v0' % vT0)
    k.I('v_and_b32 v%d, 63, v0' % vLane)
    k.I('v_readfirstlane_b32 s%d, v%d' % (sW, vT0))
    k.I('s_and_b32 s%d, s2, 7' % sT0)
    k.I('s_lshr_b32 s%d, s2, 3' % sT1)
    k.I('s_lshr_b32 s%d, s%d, 1' % (sQt, sT0))
    k.I('s_lshl_b32 s%d, s%d, 3' % (sQt, sQt))
    k.I('s_and_b32 s%d, s%d, 7' % (sNt, sT1))
    k.I('s_add_u32 s%d, s%d, s%d' % (sQt, sQt, sNt))
    k.I('s_and_b32 s%d, s%d, 1' % (sNt, sT0))
    k.I('s_lshl_b32 s%d, s%d, 2' % (sNt, sNt))
    k.I('s_lshr_b32 s%d, s%d, 3' % (sT1, sT1))
    k.I('s_add_u32 s%d, s%d, s%d' % (sNt, sNt, sT1))
    k.I('v_lshlrev_b32 v%d, 4, v%d' % (vOff, vLane))
    k.I('v_add_u32 v%d, 0x1000, v%d' % (vOff2, vOff))
    k.I('s_lshl_b32 s%d, s%d, 12' % (sOo, sW))
    k.I('s_mul_i32 s%d, s%d, 5120' % (sPo, sW))
    k.wait(lg=0)
    k.I('s_lshl_b32 s%d, s%d, 19' % (sT0, sQt))
    srd(k, sO, 18, 19, 's%d' % sT0, 524288)
    k.I('s_mul_i32 s%d, s%d, 655360' % (sT0, sNt))
    k.I('s_add_u32 s%d, s%d, %d' % (sT0, sT0, WOP_OFF))
    srd(k, sP, 18, 19, 's%d' % sT0, 655360)
    srd(k, sOUT, 14, 15, None, 2048 * 1280)

    def loads(j):
        b = BUF + (j % 4) * 36
        out = []
        order = [('B', 0), ('A', 0), ('B', 1), ('B', 2), ('B', 3), ('A', 1), ('A', 2), ('A', 3), ('A', 4)]
        for kind, n in order:
            if kind == 'B':
                out.append('buffer_load_dwordx4 %s, v%d, %s, s%d offen offset:%d' % (vr(b + 20 + 4 * n, 4), vOff, sr(sO, 4), sOo, 1024 * n))
            elif n < 4:
                out.append('buffer_load_dwordx4 %s, v%d, %s, s%d offen offset:%d' % (vr(b + 4 * n, 4), vOff, sr(sP, 4), sPo, 1024 * n))
            else:
                out.append('buffer_load_dwordx4 %s, v%d, %s, s%d offen' % (vr(b + 4 * n, 4), vOff2, sr(sP, 4), sPo))
        out.append('s_add_u32 s%d, s%d, %d' % (sOo, sOo, 4 * 4096))
        out.append('s_add_u32 s%d, s%d, %d' % (sPo, sPo, 4 * 5120))
        return out
    for j in range(3):
        for t in loads(j):
            k.I(t)
    for r in range(80):
        k.I('v_mov_b32 v%d, 0' % (ACC + r))
    k.I('s_mul_i32 s%d, s%d, 20480' % (sT0, sW))
    k.I('v_add_u32 v%d, s%d, v%d' % (vLw, sT0, vOff))
    k.I('s_mul_i32 s%d, s%d, 5120' % (sT0, sW))
    k.I('v_add_u32 v%d, s%d, v%d' % (vLr, sT0, vOff))
    k.I('v_and_b32 v%d, 15, v%d' % (vT0, vLane))
    k.I('v_mul_u32_u24 v%d, 1280, v%d' % (vT0, vT0))
    k.I('v_lshrrev_b32 v%d, 4, v%d' % (vT1, vLane))
    k.I('v_lshl_add_u32 v%d, v%d, 3, v%d' % (vT0, vT1, vT0))
    k.I('s_lshl_b32 s%d, s%d, 2' % (sT0, sQt))
    k.I('s_add_u32 s%d, s%d, s%d' % (sT0, sT0, sW))
    k.I('s_mul_i32 s%d, s%d, %d' % (sT0, sT0, 16 * 1280))
    k.I('s_mul_i32 s%d, s%d, 160' % (sT1, sNt))
    k.I('s_add_u32 s%d, s%d, s%d' % (sT0, sT0, sT1))
    k.I('v_add_u32 v%d, s%d, v%d' % (vSt, sT0, vT0))
    stamp(k, cfg, 1)
    for j in range(32):
        k.mark('mm')
        b = BUF + (j % 4) * 36
        ld = loads(j + 3)
        n_m = 0
        for n in range(5):
            for q in range(4):
                a = ACC + (n * 4 + q) * 4
                k.I('%s %s, %s, %s, %s' % (MF16, vr(a, 4), vr(b + 4 * n, 4), vr(b + 20 + 4 * q, 4), vr(a, 4)))
                if n_m % 2 == 0 and ld:
                    k.I(ld.pop(0))
                n_m += 1
        for t in ld:
            k.I(t)
    k.mark('mm')
    stamp(k, cfg, 2)
    for q in range(4):
        for n in range(5):
            a = ACC + (n * 4 + q) * 4
            k.I('ds_write_b128 v%d, %s offset:%d' % (vLw, vr(a, 4), (q * 5 + n) * 1024))
    k.I('v_add_u32 v%d, 40960, v%d' % (vT1, vLr))
    k.wait(lg=0)
    k.I('s_barrier')
    for src in range(4):
        for n in range(5):
            k.I('ds_read_b128 %s, v%d offset:%d' % (vr(ACC + (src * 5 + n) * 4, 4), vLr if src < 2 else vT1, (src % 2) * 20480 + n * 1024))
    for n in range(5):
        for r in range(4):
            a = ACC + n * 4 + r
            k.I('v_add_f32 v%d, v%d, v%d' % (a, a, a + 20))
            k.I('v_add_f32 v%d, v%d, v%d' % (a + 40, a + 40, a + 60))
            k.I('v_add_f32 v%d, v%d, v%d' % (a, a, a + 40))
        a = ACC + n * 4
        k.I('v_cvt_pk_bf16_f32 v%d, v%d, v%d' % (a, a, a + 1))
        k.I('v_cvt_pk_bf16_f32 v%d, v%d, v%d' % (a + 1, a + 2, a + 3))
        k.I('buffer_store_dwordx2 %s, v%d, %s, 0 offen offset:%d' % (vr(a, 2), vSt, sr(sOUT, 4), 32 * n))
    stamp(k, cfg, 3)
    prof_out(k, cfg, sW, 5, 1, 100, 101)
    k.label('L_b_end')
    k.I('s_endpgm')
    k.fold('mm', 0, 4, 8, 's%d' % sLoop)
    return k


HEAD = open('cdna_kernels/%s.s.ref' % NAME).read().split('; Override launch')[0]


def desc(name, vg=256):
    return '''.amdhsa_kernel %s
  .amdhsa_next_free_vgpr %d
  .amdhsa_next_free_sgpr 96
  .amdhsa_accum_offset %d
  .amdhsa_group_segment_fixed_size 0
  .amdhsa_kernarg_size 64
  .amdhsa_user_sgpr_count 2
  .amdhsa_user_sgpr_kernarg_segment_ptr 1
  .amdhsa_system_sgpr_workgroup_id_x 1
.end_amdhsa_kernel
''' % (name, vg, vg)


def build(cfg, path):
    a = gen_a(cfg)
    b = gen_b(cfg)
    a.report(); b.report()
    s = HEAD
    s += '; @launch kernel=%s grid=(512,1,1) block=(256,1,1) lds=%d\n' % (KA, LDS_A)
    if not cfg.get('only_a'):
        s += '; @launch kernel=%s grid=(256,1,1) block=(256,1,1) lds=81920\n' % KB
    s += '.amdgcn_target "amdgcn-amd-amdhsa--gfx950"\n.text\n'
    for nm, kk in ((KA, a), (KB, b)):
        s += '.globl %s\n.p2align 8\n.type %s,@function\n%s:\n' % (nm, nm, nm)
        s += kk.text()
    s += '.section .rodata,"a"\n.p2align 6\n' + desc(KA) + '.p2align 6\n' + desc(KB)
    open(path, 'w').write(s)


DEF = dict(kvmod='', omod='', touch=0, dmagap=8)
if __name__ == '__main__':
    cfg = dict(DEF)
    path = 'cdna_kernels/%s.s' % NAME
    for a in sys.argv[1:]:
        kx, v = a.split('=', 1)
        if kx == 'out':
            path = v
        else:
            cfg[kx] = int(v) if v.lstrip('-').isdigit() else v.replace('_', ' ')
    build(cfg, path)
```

```python
import sys
from asmlib import *

NAME = 'standalone__gqa_block_cached__near_ridge'
KA = NAME + '_kernel'
KB = 'gqa_outproj_kernel'

LDS_K = 1024
KSLOT = 8448
LDS_V = LDS_K + 4 * KSLOT
VSLOT = 8704
LDS_A = LDS_V + 4 * VSLOT
WOP_OFF = 16 * 1024 * 1024
CSCALE = 0x3e0293ee
import struct, math
CSCALE = struct.unpack('<I', struct.pack('<f', math.log2(math.e) / math.sqrt(128.0)))[0]
THR = struct.unpack('<I', struct.pack('<f', 16384.0))[0]


def vr(a, n):
    return 'v[%d:%d]' % (a, a + n - 1) if n > 1 else 'v%d' % a


def sr(a, n):
    return 's[%d:%d]' % (a, a + n - 1) if n > 1 else 's%d' % a


MF32 = 'v_mfma_f32_32x32x16_bf16'
MF16 = 'v_mfma_f32_16x16x32_bf16'


def srd(k, d, base_lo, base_hi, off_lo=None, nrec=0, off_hi=None):
    if off_lo is None:
        k.I('s_mov_b32 s%d, s%d' % (d, base_lo))
        k.I('s_mov_b32 s%d, s%d' % (d + 1, base_hi))
    else:
        k.I('s_add_u32 s%d, s%d, %s' % (d, base_lo, off_lo))
        k.I('s_addc_u32 s%d, s%d, 0' % (d + 1, base_hi))
    k.I('s_mov_b32 s%d, %s' % (d + 2, nrec))
    k.I('s_mov_b32 s%d, 0x20000' % (d + 3))


PROF_OFF = 128 * 1024 * 1024


def stamp(k, cfg, n):
    if cfg.get('prof'):
        k.I('s_memrealtime s[%d:%d]' % (70 + 2 * n, 71 + 2 * n))


def prof_out(k, cfg, sW, nst, region, vA, vB):
    if not cfg.get('prof'):
        return
    k.wait(vm=0)
    stamp(k, cfg, nst - 1)
    k.I('s_getreg_b32 s68, hwreg(HW_REG_HW_ID)')
    k.I('s_getreg_b32 s69, hwreg(HW_REG_XCC_ID)')
    k.I('s_add_u32 s44, s18, %d' % (PROF_OFF + region * 1048576))
    k.I('s_addc_u32 s45, s19, 0')
    k.I('s_mov_b32 s46, 1048576')
    k.I('s_mov_b32 s47, 0x20000')
    k.I('s_lshl_b32 s67, s2, 2')
    k.I('s_add_u32 s67, s67, s%d' % sW)
    k.I('s_lshl_b32 s67, s67, 6')
    k.I('s_waitcnt lgkmcnt(0)')
    k.I('v_mov_b32 v%d, 0' % vA)
    k.I('s_mov_b64 exec, 1')
    lst = [68, 69] + [70 + 2 * n for n in range(nst)]
    for i, r in enumerate(lst):
        k.I('v_mov_b32 v%d, s%d' % (vB + i, r))
        k.I('buffer_store_dword v%d, v%d, s[44:47], s67 offen offset:%d' % (vB + i, vA, 4 * i))


def gen_a(cfg):
    k = Kern('a')
    sX, sK, sV, sWQ, sWO, sWS = 20, 24, 28, 32, 36, 40
    sW, sB, sH, sT0, sT1, sT2 = 48, 49, 50, 51, 52, 53
    sMK, sMV, sMX = 54, 55, 56
    sWo, sXo, sKo, sVo = 57, 58, 59, 60
    sLoop, sRet, sThr, sC, sPk, sOo = 61, 62, 63, 64, 65, 66
    O, Q, NEGM, S0, P0, KF, VF, TMP = 0, 64, 96, 112, 144, 160, 192, 224
    S = [S0, S0 + 16]
    P = [P0, P0 + 8]
    vL, vLs, vKra, vVra, vKdo, vVdo = 232, 233, 234, 235, 236, 237
    vWra, vXra, vWd0, vWd1, vXdo, vLane = 238, 239, 240, 241, 242, 243
    vT0, vT1, vT2, vT3, vPk0, vPk1, vOo = 244, 245, 246, 247, 248, 249, 250
    WF = [KF, VF]
    XF = [S0, S0 + 16]
    PKT = list(range(NEGM, NEGM + 16)) + list(range(P0, P0 + 16))

    k.I('s_cmp_ge_u32 s2, 512')
    k.I('s_cbranch_scc1 L_a_end')
    stamp(k, cfg, 0)
    k.I('s_load_dwordx16 s[4:19], s[0:1], 0')
    k.I('v_lshrrev_b32 v%d, 6, v0' % vT0)
    k.I('v_and_b32 v%d, 63, v0' % vLane)
    k.I('v_readfirstlane_b32 s%d, v%d' % (sW, vT0))
    k.I('s_and_b32 s%d, s2, 7' % sT0)
    k.I('s_lshr_b32 s%d, s2, 3' % sT1)
    k.I('s_and_b32 s%d, s%d, 1' % (sB, sT0))
    k.I('s_lshl_b32 s%d, s%d, 3' % (sB, sB))
    k.I('s_and_b32 s%d, s%d, 7' % (sT2, sT1))
    k.I('s_add_u32 s%d, s%d, s%d' % (sB, sB, sT2))
    k.I('s_lshr_b32 s%d, s%d, 1' % (sH, sT0))
    k.I('s_lshl_b32 s%d, s%d, 3' % (sH, sH))
    k.I('s_lshr_b32 s%d, s%d, 3' % (sT2, sT1))
    k.I('s_add_u32 s%d, s%d, s%d' % (sH, sH, sT2))
    L = vLane
    k.I('v_lshrrev_b32 v%d, 4, v%d' % (vT0, L))
    k.I('v_lshlrev_b32 v%d, 3, v%d' % (vT1, vT0))
    k.I('s_lshl_b32 s%d, s%d, 1' % (sT0, sW))
    k.I('v_add_u32 v%d, s%d, v%d' % (vT1, sT0, vT1))
    k.I('v_and_b32 v%d, 15, v%d' % (vT2, L))
    k.I('v_lshlrev_b32 v%d, 4, v%d' % (vT3, vT2))
    k.I('v_lshl_add_u32 v%d, v%d, 13, v%d' % (vWd0, vT1, vT3))
    k.I('v_add_u32 v%d, 0x2000, v%d' % (vWd1, vWd0))
    k.I('v_lshl_add_u32 v%d, v%d, 8, v%d' % (vVdo, vT1, vT3))
    k.I('v_and_b32 v%d, 1, v%d' % (vT0, vT0))
    k.I('v_xor_b32 v%d, v%d, v%d' % (vT2, vT2, vT0))
    k.I('v_lshlrev_b32 v%d, 4, v%d' % (vT3, vT2))
    k.I('v_lshl_add_u32 v%d, v%d, 8, v%d' % (vKdo, vT1, vT3))
    k.I('v_bfe_u32 v%d, v%d, 4, 1' % (vT0, L))
    k.I('v_bfe_u32 v%d, v%d, 3, 1' % (vT1, L))
    k.I('v_lshrrev_b32 v%d, 5, v%d' % (vT2, L))
    k.I('v_lshlrev_b32 v%d, 2, v%d' % (vT3, vT0))
    k.I('v_lshl_add_u32 v%d, v%d, 3, v%d' % (vT3, vT1, vT3))
    k.I('v_lshl_add_u32 v%d, v%d, 4, v%d' % (vT3, vT2, vT3))
    k.I('s_lshl_b32 s%d, s%d, 5' % (sT0, sW))
    k.I('v_add_u32 v%d, s%d, v%d' % (vT3, sT0, vT3))
    k.I('v_mul_u32_u24 v%d, 0x500, v%d' % (vT3, vT3))
    k.I('v_and_b32 v%d, 7, v%d' % (vT1, L))
    k.I('v_xor_b32 v%d, v%d, v%d' % (vT1, vT1, vT0))
    k.I('v_lshl_add_u32 v%d, v%d, 4, v%d' % (vXdo, vT1, vT3))
    k.I('s_mul_i32 s%d, s%d, %d' % (sMK, sW, 2 * 1056))
    k.I('s_add_u32 s%d, s%d, %d' % (sMK, sMK, LDS_K))
    k.I('s_mul_i32 s%d, s%d, %d' % (sMV, sW, 2 * 1088))
    k.I('s_add_u32 s%d, s%d, %d' % (sMV, sMV, LDS_V))
    k.I('s_mul_i32 s%d, s%d, %d' % (sMX, sW, 4224))
    k.I('s_add_u32 s%d, s%d, %d' % (sMX, sMX, LDS_K))
    k.wait(lg=0)
    k.I('s_mul_i32 s%d, s%d, %d' % (sT0, sB, 163840))
    srd(k, sX, 4, 5, 's%d' % sT0, 163840)
    k.I('s_lshl_b32 s%d, s%d, 8' % (sT0, sH))
    srd(k, sWQ, 10, 11, 's%d' % sT0, 0)
    k.I('s_sub_u32 s%d, %d, s%d' % (sWQ + 2, 640 * 8192, sT0))
    k.I('s_mov_b32 s%d, 0' % sWo)
    k.I('s_mov_b32 s%d, 0' % sXo)

    def dmaW(i):
        slot = i % 4
        for j in range(2):
            yield ('s_add_u32 m0, s%d, %d' % (sMV, slot * VSLOT + j * 1088), None)
            yield ('buffer_load_dwordx4 v%d, %s, s%d offen lds' % ([vWd0, vWd1][j], sr(sWQ, 4), sWo), 'W%d' % i)
        yield ('s_add_u32 s%d, s%d, %d' % (sWo, sWo, 32 * 8192), None)

    def dmaX(c):
        par = c % 2
        for j in range(4):
            yield ('s_add_u32 m0, s%d, %d' % (sMX, par * 16896 + j * 1056 - j * 1280), None) if (par or True) else None
            off = ' offset:%d' % (j * 1280) if j else ''
            yield ('buffer_load_dwordx4 v%d, %s, s%d offen%s lds' % (vXdo, sr(sX, 4), sXo, off), 'X%d' % c)
        yield ('s_add_u32 s%d, s%d, 128' % (sXo, sXo), None)

    def dmaK(t):
        slot = t % 4
        for j in range(2):
            yield ('s_add_u32 m0, s%d, %d' % (sMK, slot * KSLOT + j * (1056 - 256)), None)
            off = ' offset:256' if j else ''
            yield ('buffer_load_dwordx4 v%d, %s, s%d offen%s%s lds' % (vKdo, sr(sK, 4), sKo, off, cfg['kvmod']), 'K%d' % t)
        yield ('s_add_u32 s%d, s%d, 8192' % (sKo, sKo), None)

    def dmaV(t):
        slot = t % 4
        for j in range(2):
            yield ('s_add_u32 m0, s%d, %d' % (sMV, slot * VSLOT + j * (1088 - 256)), None)
            off = ' offset:256' if j else ''
            yield ('buffer_load_dwordx4 v%d, %s, s%d offen%s%s lds' % (vVdo, sr(sV, 4), sVo, off, cfg['kvmod']), 'V%d' % t)
        yield ('s_add_u32 s%d, s%d, 8192' % (sVo, sVo), None)

    def emit(g):
        for t, tag in g:
            k.I(t, tag)

    emit(dmaW(0)); emit(dmaX(0)); emit(dmaW(1)); emit(dmaX(1)); emit(dmaW(2)); emit(dmaW(3))
    k.I('s_lshl_b32 s%d, s%d, 5' % (sT0, sB))
    k.I('s_add_u32 s%d, s%d, s%d' % (sT0, sT0, sH))
    k.I('s_lshl_b32 s%d, s%d, 17' % (sT0, sT0))
    srd(k, sK, 6, 7, 's%d' % sT0, 131072)
    srd(k, sV, 8, 9, 's%d' % sT0, 131072)
    srd(k, sWO, 12, 13, None, 4096 * 1280)
    srd(k, sWS, 18, 19, None, WOP_OFF + 5242880)
    k.I('s_mov_b32 s%d, 0' % sKo)
    k.I('s_mov_b32 s%d, 0' % sVo)
    k.I('s_mov_b32 s%d, 0x%x' % (sThr, THR))
    k.I('s_mov_b32 s%d, 0x%x' % (sC, CSCALE))
    if cfg['touch']:
        k.I('v_lshlrev_b32 v%d, 7, v%d' % (vT0, L))
        k.I('s_lshl_b32 s%d, s%d, 13' % (sT0, sW))
        for j in range(cfg['touch']):
            k.I('buffer_load_dword v%d, v%d, %s, s%d offen' % (Q + 2 * j, vT0, sr(sK, 4), sT0), 'touch')
            k.I('buffer_load_dword v%d, v%d, %s, s%d offen' % (Q + 2 * j + 1, vT0, sr(sV, 4), sT0), 'touch')
            k.I('s_add_u32 s%d, s%d, 32768' % (sT0, sT0))
    k.I('s_lshl_b32 s%d, s2, 1' % sT0)
    k.I('s_lshr_b32 s%d, s%d, 1' % (sT1, sW))
    k.I('s_add_u32 s%d, s%d, s%d' % (sT0, sT0, sT1))
    k.I('s_and_b32 s%d, s%d, 1' % (sT1, sW))
    k.I('s_lshl_b32 s%d, s%d, 1' % (sT1, sT1))
    k.I('s_mul_i32 s%d, s%d, 5' % (sPk, sT0))
    k.I('s_add_u32 s%d, s%d, s%d' % (sPk, sPk, sT1))
    k.I('s_lshl_b32 s%d, s%d, 10' % (sPk, sPk))
    k.I('s_add_u32 s%d, s%d, %d' % (sPk, sPk, WOP_OFF))
    k.I('s_lshr_b32 s%d, s%d, 7' % (sT2, sT0))
    k.I('s_mul_i32 s%d, s%d, 160' % (sT2, sT2))
    k.I('s_lshl_b32 s%d, s%d, 5' % (sT1, sT1))
    k.I('s_add_u32 s%d, s%d, s%d' % (sT2, sT2, sT1))
    k.I('s_and_b32 s%d, s%d, 127' % (sT0, sT0))
    k.I('s_mul_i32 s%d, s%d, %d' % (sT0, sT0, 32 * 1280))
    k.I('s_add_u32 s%d, s%d, s%d' % (sT2, sT2, sT0))
    k.I('v_lshrrev_b32 v%d, 4, v%d' % (vT0, L))
    k.I('v_mul_u32_u24 v%d, %d, v%d' % (vT0, 8 * 1280, vT0))
    k.I('v_and_b32 v%d, 15, v%d' % (vT1, L))
    k.I('v_lshl_add_u32 v%d, v%d, 1, v%d' % (vPk0, vT1, vT0))
    k.I('v_add_u32 v%d, %d, v%d' % (vPk1, 4 * 1280, vPk0))
    for j in range(3):
        for i in range(8):
            off = (i % 4) * 1280 + 32 * j
            k.I('buffer_load_ushort v%d, v%d, %s, s%d offen offset:%d' % (
                PKT[j * 8 + i], [vPk0, vPk1][i // 4], sr(sWO, 4), sT2, off), 'pk')
    k.I('v_and_b32 v%d, 7, v%d' % (vT0, L))
    k.I('v_mul_u32_u24 v%d, 1056, v%d' % (vT0, vT0))
    k.I('v_bfe_u32 v%d, v%d, 3, 2' % (vT1, L))
    k.I('v_lshl_add_u32 v%d, v%d, 8, v%d' % (vT0, vT1, vT0))
    k.I('v_lshrrev_b32 v%d, 5, v%d' % (vT2, L))
    k.I('v_and_b32 v%d, 1, v%d' % (vT1, vT1))
    k.I('v_xor_b32 v%d, v%d, v%d' % (vT1, vT1, vT2))
    k.I('v_lshl_add_u32 v%d, v%d, 4, v%d' % (vT0, vT1, vT0))
    k.I('v_add_u32 v%d, %d, v%d' % (vKra, LDS_K, vT0))
    k.I('v_bfe_u32 v%d, v%d, 4, 1' % (vT0, L))
    k.I('v_lshlrev_b32 v%d, 5, v%d' % (vT0, vT0))
    k.I('v_and_b32 v%d, 1, v%d' % (vT1, L))
    k.I('v_lshl_add_u32 v%d, v%d, 4, v%d' % (vT0, vT1, vT0))
    k.I('v_bfe_u32 v%d, v%d, 1, 1' % (vT1, L))
    k.I('v_lshl_add_u32 v%d, v%d, 3, v%d' % (vT0, vT1, vT0))
    k.I('v_bfe_u32 v%d, v%d, 2, 2' % (vT1, L))
    k.I('v_mul_u32_u24 v%d, 1088, v%d' % (vT1, vT1))
    k.I('v_add3_u32 v%d, v%d, v%d, v%d' % (vT0, vT0, vT1, vT1))
    k.I('v_sub_u32 v%d, v%d, v%d' % (vT0, vT0, vT1))
    k.I('v_add_u32 v%d, %d, v%d' % (vT0, LDS_V, vT0))
    k.I('v_lshl_add_u32 v%d, v%d, 8, v%d' % (vWra, vT2, vT0))
    k.I('v_mul_u32_u24 v%d, %d, v%d' % (vT1, 4 * 1088, vT2))
    k.I('v_add_u32 v%d, v%d, v%d' % (vVra, vT0, vT1))
    k.I('v_and_b32 v%d, 3, v%d' % (vT0, L))
    k.I('v_mul_u32_u24 v%d, 1056, v%d' % (vT0, vT0))
    k.I('v_bfe_u32 v%d, v%d, 3, 1' % (vT1, L))
    k.I('v_lshl_add_u32 v%d, v%d, 7, v%d' % (vT0, vT1, vT0))
    k.I('v_bfe_u32 v%d, v%d, 4, 1' % (vT1, L))
    k.I('v_lshl_add_u32 v%d, v%d, 9, v%d' % (vT0, vT1, vT0))
    k.I('v_bfe_u32 v%d, v%d, 2, 1' % (vT1, L))
    k.I('v_lshl_add_u32 v%d, v%d, 8, v%d' % (vT0, vT1, vT0))
    k.I('v_xor_b32 v%d, v%d, v%d' % (vT1, vT1, vT2))
    k.I('v_lshl_add_u32 v%d, v%d, 4, v%d' % (vT0, vT1, vT0))
    k.I('v_add_u32 v%d, s%d, v%d' % (vXra, sMX, vT0))
    k.I('v_bfe_u32 v%d, v%d, 4, 1' % (vT0, L))
    k.I('v_lshlrev_b32 v%d, 10, v%d' % (vT0, vT0))
    k.I('v_and_b32 v%d, 15, v%d' % (vT1, L))
    k.I('v_lshl_add_u32 v%d, v%d, 4, v%d' % (vT0, vT1, vT0))
    k.I('v_lshl_add_u32 v%d, v%d, 8, v%d' % (vOo, vT2, vT0))
    k.I('s_lshl_b32 s%d, s%d, 1' % (sOo, sB))
    k.I('s_lshr_b32 s%d, s%d, 1' % (sT0, sW))
    k.I('s_add_u32 s%d, s%d, s%d' % (sOo, sOo, sT0))
    k.I('s_lshl_b32 s%d, s%d, 19' % (sOo, sOo))
    k.I('s_lshl_b32 s%d, s%d, 14' % (sT0, sH))
    k.I('s_add_u32 s%d, s%d, s%d' % (sOo, sOo, sT0))
    k.I('s_and_b32 s%d, s%d, 1' % (sT0, sW))
    k.I('s_lshl_b32 s%d, s%d, 11' % (sT0, sT0))
    k.I('s_add_u32 s%d, s%d, s%d' % (sOo, sOo, sT0))
    for r in range(64):
        k.I('v_mov_b32 v%d, 0' % (O + r))

    def rdW(i):
        out = []
        for s in range(2):
            for T in range(4):
                for e in range(2):
                    d = WF[i % 2] + (s * 4 + T) * 4 + 2 * e
                    out.append(('ds_read_b64_tr_b16 %s, v%d offset:%d' % (
                        vr(d, 2), vWra, (i % 4) * VSLOT + e * 4352 + s * 512 + T * 64), None))
        return out

    def rdX(c):
        return [('ds_read_b128 %s, v%d offset:%d' % (vr(XF[c % 2] + 4 * s, 4), vXra, (c % 2) * 16896 + 32 * s), None)
                for s in range(4)]

    def rdK(t, dst):
        return [('ds_read_b128 %s, v%d offset:%d' % (vr(dst + 4 * s, 4), vKra, (t % 4) * KSLOT + 32 * s), None)
                for s in range(8)]

    def rdV(t):
        out = []
        for s in range(2):
            for T in range(4):
                for e in range(2):
                    d = VF + (s * 4 + T) * 4 + 2 * e
                    out.append(('ds_read_b64_tr_b16 %s, v%d offset:%d' % (
                        vr(d, 2), vVra, (t % 4) * VSLOT + (2 * s + e) * 256 + T * 64), None))
        return out

    def sched(mf, gaps):
        for g, m in enumerate(mf):
            k.I(m)
            for t, tag in gaps.get(g, []):
                k.I(t, tag)

    stamp(k, cfg, 1)
    k.wait_tag('W0', 'X0')
    k.I('s_barrier')
    stamp(k, cfg, 2)
    emit(rdX(0)); emit(rdW(0))
    NQ = 20
    pack_ops = []
    for j in range(3):
        for p in range(4):
            pack_ops.append(('v_lshl_or_b32 v%d, v%d, 16, v%d' % (Q + 4 * j + p, PKT[j * 8 + 2 * p + 1], PKT[j * 8 + 2 * p]), None))
    for i in range(NQ):
        k.mark('qp')
        need = []
        if i + 1 < NQ:
            need.append('W%d' % (i + 1))
        if i % 2 == 1 and (i + 1) // 2 < 10:
            need.append('X%d' % ((i + 1) // 2))
        if i == 19:
            need.append('K0')
        k.wait_tag(*need, lg=0)
        k.I('s_barrier')
        c = i // 2
        mf = []
        for s in range(2):
            for T in range(4):
                mf.append('%s %s, %s, %s, %s' % (MF32, vr(O + 16 * T, 16), vr(WF[i % 2] + (s * 4 + T) * 4, 4),
                                                 vr(XF[c % 2] + ((i % 2) * 2 + s) * 4, 4), vr(O + 16 * T, 16)))
        gaps = {g: [] for g in range(8)}
        rd = []
        if i + 1 < NQ:
            rd = rdW(i + 1)
        else:
            rd = rdK(0, KF)
        if i % 2 == 1 and (i + 1) // 2 < 10:
            rd = rdX((i + 1) // 2) + rd
        per = -(-len(rd) // 6)
        for n, r in enumerate(rd):
            gaps[n // per].append(r)
        dm = []
        if i % 2 == 0:
            if c + 2 < 10:
                dm += list(dmaX(c + 2))
            elif i == 16:
                dm += list(dmaK(0)) + list(dmaK(1))
            elif i == 18:
                dm += list(dmaK(2)) + list(dmaK(3))
        if i + 4 < NQ:
            dm += list(dmaW(i + 4))
        elif i - 16 < 3:
            dm += list(dmaV(i - 16))
        g = 0
        n = 0
        for t, tag in dm:
            gaps[min(g, 7)].append((t, tag))
            if tag is not None:
                g += 1
        if i == 17:
            for n, p in enumerate(pack_ops):
                gaps[2 + n // 2].append(p)
        if i == 18:
            k.I('v_lshlrev_b32 v%d, 4, v%d' % (vT0, L))
            for j in range(3):
                gaps[5 + j].append(('buffer_store_dwordx4 %s, v%d, %s, s%d offen offset:%d' % (
                    vr(Q + 4 * j, 4), vT0, sr(sWS, 4), sPk, 1024 * j), 'pkst'))
        sched(mf, gaps)
    k.mark('qp')
    stamp(k, cfg, 3)
    k.wait_tag('K1')
    k.I('s_barrier')
    emit(rdK(1, VF))
    for T in range(4):
        for r in range(16):
            k.I('v_mul_f32 v%d, s%d, v%d' % (O + 16 * T + r, sC, O + 16 * T + r))
        for p in range(8):
            k.I('v_cvt_pk_bf16_f32 v%d, v%d, v%d' % (Q + 8 * T + p, O + 16 * T + 2 * p, O + 16 * T + 2 * p + 1))
    if cfg.get('dumpq'):
        k.I('s_lshl_b32 s%d, s%d, 5' % (sT0, sB))
        k.I('s_add_u32 s%d, s%d, s%d' % (sT0, sT0, sH))
        k.I('s_lshl_b32 s%d, s%d, 2' % (sT0, sT0))
        k.I('s_add_u32 s%d, s%d, s%d' % (sT0, sT0, sW))
        k.I('s_lshl_b32 s%d, s%d, 13' % (sT0, sT0))
        k.I('v_lshlrev_b32 v%d, 4, v%d' % (vT0, L))
        for s in range(8):
            k.I('buffer_store_dwordx4 %s, v%d, %s, s%d offen' % (vr(Q + 4 * s, 4), vT0, sr(sWS, 4), sT0))
            k.I('s_add_u32 s%d, s%d, 1024' % (sT0, sT0))
        k.wait(vm=0)
        k.I('s_endpgm')
    k.wait_tag('K2', lg=0)
    k.I('s_barrier')
    for r in range(64):
        k.I('v_mov_b32 v%d, 0' % (O + r))

    def qk(t, kf, c0):
        d = S[t % 2]
        return ['%s %s, %s, %s, %s' % (MF32, vr(d, 16), vr(kf + 4 * s, 4), vr(Q + 4 * s, 4),
                                       (c0 if s == 0 else vr(d, 16))) for s in range(8)]

    gaps = {g: [] for g in range(16)}
    dm = list(dmaK(4)) + list(dmaK(5))
    g = 0
    for t, tag in dm:
        gaps[g].append((t, tag))
        if tag is not None:
            g += 1
    for n, r in enumerate(rdK(2, KF)):
        gaps[8 + n // 2].append(r)
    sched(qk(0, KF, '0') + qk(1, VF, '0'), gaps)

    def maxtree(src, dst):
        k.I('v_max3_f32 v%d, v%d, v%d, v%d' % (dst, src, src + 1, src + 2))
        for r in range(3, 15, 2):
            k.I('v_max3_f32 v%d, v%d, v%d, v%d' % (dst, dst, src + r, src + r + 1))
        k.I('v_max_f32 v%d, v%d, v%d' % (dst, dst, src + 15))

    maxtree(S[0], vT0)
    k.I('v_mov_b32 v%d, v%d' % (vT1, vT0))
    k.I('v_permlane32_swap_b32 v%d, v%d' % (vT0, vT1))
    k.I('v_max_f32 v%d, v%d, v%d' % (vT0, vT0, vT1))
    for r in range(16):
        k.I('v_sub_f32 v%d, 0, v%d' % (NEGM + r, vT0))
    for r in range(16):
        k.I('v_sub_f32 v%d, v%d, v%d' % (S[0] + r, S[0] + r, vT0))
    for r in range(16):
        k.I('v_exp_f32 v%d, v%d' % (VF + r, S[0] + r))
    for r in range(16):
        k.I('v_sub_f32 v%d, v%d, v%d' % (S[1] + r, S[1] + r, vT0))
    k.I('v_add_f32 v%d, v%d, v%d' % (vL, VF, VF + 1))
    for r in range(2, 16):
        k.I('v_add_f32 v%d, v%d, v%d' % (vL, vL, VF + r))
    for p in range(8):
        k.I('v_cvt_pk_bf16_f32 v%d, v%d, v%d' % (P[0] + p, VF + 2 * p, VF + 2 * p + 1))

    NT = 16
    sites = []
    stamp(k, cfg, 4)
    for t in range(NT):
        k.mark('at')
        need = ['V%d' % t]
        if t + 3 < NT:
            need.append('K%d' % (t + 3))
        k.wait_tag(*need, lg=0)
        k.I('s_barrier')
        mf = []
        if t + 2 < NT:
            mf += qk(t + 2, KF, vr(NEGM, 16))
        nq = len(mf)
        for s in range(2):
            for T in range(4):
                mf.append('%s %s, %s, %s, %s' % (MF32, vr(O + 16 * T, 16), vr(VF + (s * 4 + T) * 4, 4),
                                                 vr(P[t % 2] + 4 * s, 4), vr(O + 16 * T, 16)))
        ng = len(mf)
        gaps = {g: [] for g in range(ng)}
        rv = rdV(t)
        if nq:
            for n, r in enumerate(rv):
                gaps[n // 2].append(r)
        else:
            emit(rv)
        if t + 3 < NT:
            for n, r in enumerate(rdK(t + 3, KF)):
                gaps[4 + n].append(r)
        dm = []
        if t < 12:
            dm += list(dmaK(t + 6))
        if t + 3 < NT:
            dm += list(dmaV(t + 3))
        g = cfg['dmagap']
        for tx, tag in dm:
            gaps[g].append((tx, tag))
            if tag is not None:
                g += 1
        tail = []
        if t + 1 < NT:
            u = t + 1
            su, pu = S[u % 2], P[u % 2]
            sm = []
            for j in range(16):
                sm.append((j, 'v_exp_f32 v%d, v%d' % (TMP + j % 8, su + j)))
                if j == 1:
                    sm.append((j + 1, 'v_add_f32 v%d, v%d, v%d' % (vLs, TMP, TMP + 1)))
                elif j > 1:
                    sm.append((j + 1, 'v_add_f32 v%d, v%d, v%d' % (vLs, vLs, TMP + j % 8)))
                if j % 2 == 1:
                    sm.append((j + 1, 'v_cvt_pk_bf16_f32 v%d, v%d, v%d' % (pu + j // 2, TMP + (j - 1) % 8, TMP + j % 8)))
            sm.sort(key=lambda x: x[0])
            for pos, tx in sm:
                gp = pos * ng // 16
                if pos >= 16:
                    tail.append(tx)
                else:
                    gaps[gp].insert(0, (tx, None)) if False else gaps[gp].append((tx, None))
        sched(mf, gaps)
        if t + 1 < NT:
            for tx in tail:
                k.I(tx)
            site = (t % 4) if t < 12 else t
            k.I('v_cmp_nle_f32 vcc, v%d, v%d' % (vLs, vLs) if False else 'v_cmp_ngt_f32 vcc, s%d, v%d' % (sThr, vLs))
            k.I('s_cbranch_vccnz L_a_fb%d' % site)
            k.label('L_a_ret%d' % site)
            k.I('v_add_f32 v%d, v%d, v%d' % (vL, vL, vLs))
            if site not in [s for s, _ in sites]:
                sites.append((site, (t + 1) % 2))
    k.mark('at')
    stamp(k, cfg, 5)
    k.I('v_mov_b32 v%d, v%d' % (vT1, vL))
    k.I('v_permlane32_swap_b32 v%d, v%d' % (vL, vT1))
    k.I('v_add_f32 v%d, v%d, v%d' % (vL, vL, vT1))
    k.I('v_rcp_f32 v%d, v%d' % (vL, vL))
    for T in range(4):
        for s in range(2):
            b = O + 16 * T + 8 * s
            d = KF + (T * 2 + s) * 4
            for r in range(8):
                k.I('v_mul_f32 v%d, v%d, v%d' % (b + r, vL, b + r))
            for p in range(4):
                k.I('v_cvt_pk_bf16_f32 v%d, v%d, v%d' % (d + p, b + 2 * p, b + 2 * p + 1))
            k.I('buffer_store_dwordx4 %s, v%d, %s, s%d offen offset:%d%s' % (vr(d, 4), vOo, sr(sWS, 4), sOo, 512 * s, cfg['omod']))
        if T < 3:
            k.I('s_add_u32 s%d, s%d, 4096' % (sOo, sOo))
    stamp(k, cfg, 6)
    prof_out(k, cfg, sW, 8, 0, 0, 1)
    k.label('L_a_end')
    k.I('s_endpgm')
    k.fold('at', 0, 4, 3, 's%d' % sLoop)
    k.fold('qp', 0, 4, 4, 's%d' % sLoop)
    T = []
    for site, par in sites:
        T.append('L_a_fb%d:' % site)
        T.append('    s_mov_b32 s%d, %d' % (sRet, site))
        T.append('    s_branch L_a_fbp%d' % par)
    for par in range(2):
        f = Kern('fb')
        su, sn, pu = S[par], S[1 - par], P[par]
        f.label('L_a_fbp%d' % par)
        f.I('s_nop 15')
        f.I('v_max3_f32 v%d, v%d, v%d, v%d' % (vT0, su, su + 1, su + 2))
        for r in range(3, 15, 2):
            f.I('v_max3_f32 v%d, v%d, v%d, v%d' % (vT0, vT0, su + r, su + r + 1))
        f.I('v_max_f32 v%d, v%d, v%d' % (vT0, vT0, su + 15))
        f.I('v_mov_b32 v%d, v%d' % (vT1, vT0))
        f.I('v_permlane32_swap_b32 v%d, v%d' % (vT0, vT1))
        f.I('v_max3_f32 v%d, v%d, v%d, 0' % (vT0, vT0, vT1))
        f.I('v_sub_f32 v%d, 0, v%d' % (vT1, vT0))
        f.I('v_exp_f32 v%d, v%d' % (vT1, vT1))
        for r in range(16):
            f.I('v_sub_f32 v%d, v%d, v%d' % (NEGM + r, NEGM + r, vT0))
        for r in range(64):
            f.I('v_mul_f32 v%d, v%d, v%d' % (O + r, O + r, vT1))
        f.I('v_mul_f32 v%d, v%d, v%d' % (vL, vL, vT1))
        for r in range(16):
            f.I('v_sub_f32 v%d, v%d, v%d' % (su + r, su + r, vT0))
            f.I('v_sub_f32 v%d, v%d, v%d' % (sn + r, sn + r, vT0))
        f.I('v_mov_b32 v%d, 0' % vLs)
        for p in range(8):
            f.I('v_exp_f32 v%d, v%d' % (TMP, su + 2 * p))
            f.I('v_exp_f32 v%d, v%d' % (TMP + 1, su + 2 * p + 1))
            f.I('s_nop 0')
            f.I('v_add_f32 v%d, v%d, v%d' % (vLs, vLs, TMP))
            f.I('v_add_f32 v%d, v%d, v%d' % (vLs, vLs, TMP + 1))
            f.I('v_cvt_pk_bf16_f32 v%d, v%d, v%d' % (pu + p, TMP, TMP + 1))
        f.I('s_nop 3')
        mine = [s for s, p in sites if p == par]
        for s in mine[:-1]:
            f.I('s_cmp_eq_u32 s%d, %d' % (sRet, s))
            f.I('s_cbranch_scc1 L_a_ret%d' % s)
        f.I('s_branch L_a_ret%d' % mine[-1])
        T.append(f.text())
    k.tail = T
    return k


def gen_b(cfg):
    k = Kern('b')
    sO, sP, sOUT = 20, 24, 28
    sW, sQt, sNt, sT0, sT1, sOo, sPo, sLoop = 48, 49, 50, 51, 52, 53, 54, 55
    ACC = 0
    BUF = 80
    vOff, vOff2, vLane, vT0, vT1, vLw, vLr, vSt = 224, 225, 226, 227, 228, 229, 230, 231
    k.I('s_cmp_ge_u32 s2, 256')
    k.I('s_cbranch_scc1 L_b_end')
    stamp(k, cfg, 0)
    k.I('s_load_dwordx16 s[4:19], s[0:1], 0')
    k.I('v_lshrrev_b32 v%d, 6, v0' % vT0)
    k.I('v_and_b32 v%d, 63, v0' % vLane)
    k.I('v_readfirstlane_b32 s%d, v%d' % (sW, vT0))
    k.I('s_and_b32 s%d, s2, 7' % sT0)
    k.I('s_lshr_b32 s%d, s2, 3' % sT1)
    k.I('s_lshr_b32 s%d, s%d, 1' % (sQt, sT0))
    k.I('s_lshl_b32 s%d, s%d, 3' % (sQt, sQt))
    k.I('s_and_b32 s%d, s%d, 7' % (sNt, sT1))
    k.I('s_add_u32 s%d, s%d, s%d' % (sQt, sQt, sNt))
    k.I('s_and_b32 s%d, s%d, 1' % (sNt, sT0))
    k.I('s_lshl_b32 s%d, s%d, 2' % (sNt, sNt))
    k.I('s_lshr_b32 s%d, s%d, 3' % (sT1, sT1))
    k.I('s_add_u32 s%d, s%d, s%d' % (sNt, sNt, sT1))
    k.I('v_lshlrev_b32 v%d, 4, v%d' % (vOff, vLane))
    k.I('v_add_u32 v%d, 0x1000, v%d' % (vOff2, vOff))
    k.I('s_lshl_b32 s%d, s%d, 12' % (sOo, sW))
    k.I('s_mul_i32 s%d, s%d, 5120' % (sPo, sW))
    k.wait(lg=0)
    k.I('s_lshl_b32 s%d, s%d, 19' % (sT0, sQt))
    srd(k, sO, 18, 19, 's%d' % sT0, 524288)
    k.I('s_mul_i32 s%d, s%d, 655360' % (sT0, sNt))
    k.I('s_add_u32 s%d, s%d, %d' % (sT0, sT0, WOP_OFF))
    srd(k, sP, 18, 19, 's%d' % sT0, 655360)
    srd(k, sOUT, 14, 15, None, 2048 * 1280)

    def loads(j):
        b = BUF + (j % 4) * 36
        out = []
        order = [('B', 0), ('A', 0), ('B', 1), ('B', 2), ('B', 3), ('A', 1), ('A', 2), ('A', 3), ('A', 4)]
        for kind, n in order:
            if kind == 'B':
                out.append('buffer_load_dwordx4 %s, v%d, %s, s%d offen offset:%d' % (vr(b + 20 + 4 * n, 4), vOff, sr(sO, 4), sOo, 1024 * n))
            elif n < 4:
                out.append('buffer_load_dwordx4 %s, v%d, %s, s%d offen offset:%d' % (vr(b + 4 * n, 4), vOff, sr(sP, 4), sPo, 1024 * n))
            else:
                out.append('buffer_load_dwordx4 %s, v%d, %s, s%d offen' % (vr(b + 4 * n, 4), vOff2, sr(sP, 4), sPo))
        out.append('s_add_u32 s%d, s%d, %d' % (sOo, sOo, 4 * 4096))
        out.append('s_add_u32 s%d, s%d, %d' % (sPo, sPo, 4 * 5120))
        return out
    for j in range(3):
        for t in loads(j):
            k.I(t)
    for r in range(80):
        k.I('v_mov_b32 v%d, 0' % (ACC + r))
    k.I('s_mul_i32 s%d, s%d, 20480' % (sT0, sW))
    k.I('v_add_u32 v%d, s%d, v%d' % (vLw, sT0, vOff))
    k.I('s_mul_i32 s%d, s%d, 5120' % (sT0, sW))
    k.I('v_add_u32 v%d, s%d, v%d' % (vLr, sT0, vOff))
    k.I('v_and_b32 v%d, 15, v%d' % (vT0, vLane))
    k.I('v_mul_u32_u24 v%d, 1280, v%d' % (vT0, vT0))
    k.I('v_lshrrev_b32 v%d, 4, v%d' % (vT1, vLane))
    k.I('v_lshl_add_u32 v%d, v%d, 3, v%d' % (vT0, vT1, vT0))
    k.I('s_lshl_b32 s%d, s%d, 2' % (sT0, sQt))
    k.I('s_add_u32 s%d, s%d, s%d' % (sT0, sT0, sW))
    k.I('s_mul_i32 s%d, s%d, %d' % (sT0, sT0, 16 * 1280))
    k.I('s_mul_i32 s%d, s%d, 160' % (sT1, sNt))
    k.I('s_add_u32 s%d, s%d, s%d' % (sT0, sT0, sT1))
    k.I('v_add_u32 v%d, s%d, v%d' % (vSt, sT0, vT0))
    stamp(k, cfg, 1)
    for j in range(32):
        k.mark('mm')
        b = BUF + (j % 4) * 36
        ld = loads(j + 3)
        n_m = 0
        for n in range(5):
            for q in range(4):
                a = ACC + (n * 4 + q) * 4
                k.I('%s %s, %s, %s, %s' % (MF16, vr(a, 4), vr(b + 4 * n, 4), vr(b + 20 + 4 * q, 4), vr(a, 4)))
                if n_m % 2 == 0 and ld:
                    k.I(ld.pop(0))
                n_m += 1
        for t in ld:
            k.I(t)
    k.mark('mm')
    stamp(k, cfg, 2)
    for q in range(4):
        for n in range(5):
            a = ACC + (n * 4 + q) * 4
            k.I('ds_write_b128 v%d, %s offset:%d' % (vLw, vr(a, 4), (q * 5 + n) * 1024))
    k.I('v_add_u32 v%d, 40960, v%d' % (vT1, vLr))
    k.wait(lg=0)
    k.I('s_barrier')
    for src in range(4):
        for n in range(5):
            k.I('ds_read_b128 %s, v%d offset:%d' % (vr(ACC + (src * 5 + n) * 4, 4), vLr if src < 2 else vT1, (src % 2) * 20480 + n * 1024))
    for n in range(5):
        for r in range(4):
            a = ACC + n * 4 + r
            k.I('v_add_f32 v%d, v%d, v%d' % (a, a, a + 20))
            k.I('v_add_f32 v%d, v%d, v%d' % (a + 40, a + 40, a + 60))
            k.I('v_add_f32 v%d, v%d, v%d' % (a, a, a + 40))
        a = ACC + n * 4
        k.I('v_cvt_pk_bf16_f32 v%d, v%d, v%d' % (a, a, a + 1))
        k.I('v_cvt_pk_bf16_f32 v%d, v%d, v%d' % (a + 1, a + 2, a + 3))
        k.I('buffer_store_dwordx2 %s, v%d, %s, 0 offen offset:%d' % (vr(a, 2), vSt, sr(sOUT, 4), 32 * n))
    stamp(k, cfg, 3)
    prof_out(k, cfg, sW, 5, 1, 100, 101)
    k.label('L_b_end')
    k.I('s_endpgm')
    k.fold('mm', 0, 4, 8, 's%d' % sLoop)
    return k


HEAD = open('cdna_kernels/%s.s.ref' % NAME).read().split('; Override launch')[0]


def desc(name, vg=256):
    return '''.amdhsa_kernel %s
  .amdhsa_next_free_vgpr %d
  .amdhsa_next_free_sgpr 96
  .amdhsa_accum_offset %d
  .amdhsa_group_segment_fixed_size 0
  .amdhsa_kernarg_size 64
  .amdhsa_user_sgpr_count 2
  .amdhsa_user_sgpr_kernarg_segment_ptr 1
  .amdhsa_system_sgpr_workgroup_id_x 1
.end_amdhsa_kernel
''' % (name, vg, vg)


def check(path):
    import subprocess
    sys.path.insert(0, 'cdna_kernels')
    import cdna_launch as cl
    asm = open(path).read()
    open('chk.s', 'w').write(cl.with_harness_metadata(asm, KA, 8, launch_lists=True))
    r = subprocess.run(['clang', '-x', 'assembler', '-target', 'amdgcn-amd-amdhsa', '-mcpu=gfx950',
                        'chk.s', '-o', 'chk.co'], capture_output=True, text=True)
    if r.returncode:
        print(r.stderr[:3000])
        raise SystemExit('ASSEMBLY FAILED')
    launches = cl.launch_list_of(asm, True)
    p = cl.address_register_problem('chk.co', KA, None if launches is None else cl.launch_list_kernel_names(launches))
    if p:
        raise SystemExit('CHECK FAILED: ' + p)
    print('OK', path)


def build(cfg, path):
    a = gen_a(cfg)
    b = gen_b(cfg)
    a.report(); b.report()
    s = HEAD
    s += '; @launch kernel=%s grid=(512,1,1) block=(256,1,1) lds=%d\n' % (KA, LDS_A)
    if not cfg.get('only_a'):
        s += '; @launch kernel=%s grid=(256,1,1) block=(256,1,1) lds=81920\n' % KB
    s += '.amdgcn_target "amdgcn-amd-amdhsa--gfx950"\n.text\n'
    for nm, kk in ((KA, a), (KB, b)):
        s += '.globl %s\n.p2align 8\n.type %s,@function\n%s:\n' % (nm, nm, nm)
        s += kk.text()
    s += '.section .rodata,"a"\n.p2align 6\n' + desc(KA) + '.p2align 6\n' + desc(KB)
    open(path, 'w').write(s)
    check(path)


DEF = dict(kvmod='', omod='', touch=0, dmagap=8)
if __name__ == '__main__':
    cfg = dict(DEF)
    path = 'cdna_kernels/%s.s' % NAME
    for a in sys.argv[1:]:
        kx, v = a.split('=', 1)
        if kx == 'out':
            path = v
        else:
            cfg[kx] = int(v) if v.lstrip('-').isdigit() else v.replace('_', ' ')
    build(cfg, path)
```

```python
import sys
from asmlib import *
from gen import vr, sr, srd, MF32, CSCALE, THR, HEAD, KA, NAME, check, PROF_OFF

LDS_K = 1024
KSLOT = 8448
KRING = 4 * KSLOT
LDS_V = 81920
VSLOT = 8704
VRING = 4 * VSLOT
WSLOT = 40960
P_OFF = 16 << 20
F_OFF = 40 << 20
WS_REC = 48 << 20


SETS = {1: ['0', '1', '2', '3', '4', '5', '6', '7', '8', '9', '10', '11'],
        2: ['0', '1', '2', 'q2', 'q4', 'q6', 'q8', 'q10', 'q12', 'q14', 'q16', 'q18'],
        3: ['0', '3', '4', 'a2', 'a4', 'a6', 'a8', 'a10', 'a12', 'a13', 'a14', 'a15'],
        4: ['0', '5', '6', '7', '8', 'o1', 'o2', 'o2b', '9', 'r', '10', '11']}


def stamp(k, cfg, n):
    if cfg.get('prof'):
        st = SETS[cfg['prof']] + ['12']
        if str(n) in st:
            n = st.index(str(n))
            k.I('s_memrealtime s[%d:%d]' % (70 + 2 * n, 71 + 2 * n))


def prof_out(k, cfg, sW, nst, vA, vB):
    if not cfg.get('prof'):
        return
    k.raw('s_waitcnt vmcnt(0)')
    stamp(k, cfg, nst - 1)
    k.I('s_getreg_b32 s68, hwreg(HW_REG_HW_ID)')
    k.I('s_getreg_b32 s69, hwreg(HW_REG_XCC_ID)')
    k.I('s_add_u32 s44, s18, %d' % PROF_OFF)
    k.I('s_addc_u32 s45, s19, 0')
    k.I('s_mov_b32 s46, 1048576')
    k.I('s_mov_b32 s47, 0x20000')
    k.I('s_lshl_b32 s67, s2, 3')
    k.I('s_add_u32 s67, s67, s%d' % sW)
    k.I('s_lshl_b32 s67, s67, 6')
    k.I('s_waitcnt lgkmcnt(0)')
    k.I('v_mov_b32 v%d, 0' % vA)
    k.I('s_mov_b64 exec, 1')
    lst = [68, 69] + [70 + 2 * n for n in range(nst)]
    for i, r in enumerate(lst):
        k.I('v_mov_b32 v%d, s%d' % (vB + i, r))
        k.I('buffer_store_dword v%d, v%d, s[44:47], s67 offen offset:%d' % (vB + i, vA, 4 * i))


def gen_f(cfg):
    k = Kern('f')
    sX, sK, sV, sWQ, sWO, sWS = 20, 24, 28, 32, 36, 40
    sOUT = 20
    sW, sB, sH, sT0, sT1, sT2 = 48, 49, 50, 51, 52, 53
    sMK, sMV, sMX = 54, 55, 56
    sWo, sXo, sKo, sVo = 57, 58, 59, 60
    sLoop, sRet, sThr, sC, sWb, sMW = 61, 62, 63, 64, 65, 66
    sQt, sG, sKq, sM, sNon, sI = 96, 97, 98, 99, 100, 101
    O, Q, NEGM, S0, P0, KF, VF, TMP = 0, 64, 96, 112, 144, 160, 192, 224
    S = [S0, S0 + 16]
    P = [P0, P0 + 8]
    vL, vLs, vKra, vVra, vKdo, vVdo = 232, 233, 234, 235, 236, 237
    vWra, vXra, vWd0, vWd1, vXdo, vLane = 238, 239, 240, 241, 242, 243
    vT0, vT1, vT2, vT3, vL16 = 244, 245, 246, 247, 248
    vWoR = [249, 250]
    vWoD = [251, 252, 253, 254, 255]
    WF = [KF, VF]
    XF = [S0, S0 + 16]
    L = vLane

    k.I('s_cmp_ge_u32 s2, 256')
    k.I('s_cbranch_scc1 L_end')
    stamp(k, cfg, 0)
    k.I('s_load_dwordx16 s[4:19], s[0:1], 0')
    k.I('v_lshrrev_b32 v%d, 6, v0' % vT0)
    k.I('v_and_b32 v%d, 63, v0' % vLane)
    k.I('v_readfirstlane_b32 s%d, v%d' % (sW, vT0))
    k.I('s_and_b32 s%d, s2, 7' % sT0)
    k.I('s_lshr_b32 s%d, s2, 3' % sI)
    k.I('s_and_b32 s%d, s%d, 1' % (sB, sT0))
    k.I('s_lshl_b32 s%d, s%d, 3' % (sB, sB))
    k.I('s_and_b32 s%d, s%d, 7' % (sT2, sI))
    k.I('s_add_u32 s%d, s%d, s%d' % (sB, sB, sT2))
    k.I('s_lshr_b32 s%d, s%d, 1' % (sKq, sT0))
    k.I('s_lshr_b32 s%d, s%d, 3' % (sM, sI))
    k.I('s_and_b32 s%d, s%d, 3' % (sQt, sW))
    k.I('s_lshr_b32 s%d, s%d, 2' % (sG, sW))
    k.I('s_lshl_b32 s%d, s%d, 2' % (sH, sKq))
    k.I('s_add_u32 s%d, s%d, s%d' % (sH, sH, sM))
    k.I('s_lshl_b32 s%d, s%d, 1' % (sH, sH))
    k.I('s_add_u32 s%d, s%d, s%d' % (sH, sH, sG))
    if cfg['rot']:
        k.I('s_lshl_b32 s%d, s%d, 1' % (sT0, sM))
        k.I('s_add_u32 s%d, s%d, s%d' % (sT0, sT0, sT2))
        k.I('s_and_b32 s%d, s%d, 7' % (sT0, sT0))
        k.I('s_mul_i32 s%d, s%d, 5' % (sT0, sT0))
        k.I('s_lshr_b32 s%d, s%d, 2' % (sT0, sT0))
        k.I('s_lshl_b32 s%d, s%d, 7' % (sXo, sT0))
        k.I('s_lshl_b32 s%d, s%d, 19' % (sWo, sT0))
    else:
        k.I('s_mov_b32 s%d, 0' % sXo)
        k.I('s_mov_b32 s%d, 0' % sWo)
    k.I('v_lshrrev_b32 v%d, 4, v%d' % (vT0, L))
    k.I('v_lshlrev_b32 v%d, 3, v%d' % (vT1, vT0))
    k.I('s_lshl_b32 s%d, s%d, 1' % (sT0, sQt))
    k.I('v_add_u32 v%d, s%d, v%d' % (vT1, sT0, vT1))
    k.I('v_and_b32 v%d, 15, v%d' % (vT2, L))
    k.I('v_lshlrev_b32 v%d, 4, v%d' % (vT3, vT2))
    k.I('v_lshl_add_u32 v%d, v%d, 13, v%d' % (vWd0, vT1, vT3))
    k.I('v_add_u32 v%d, 0x2000, v%d' % (vWd1, vWd0))
    k.I('v_lshl_add_u32 v%d, v%d, 8, v%d' % (vVdo, vT1, vT3))
    k.I('v_and_b32 v%d, 1, v%d' % (vT0, vT0))
    k.I('v_xor_b32 v%d, v%d, v%d' % (vT2, vT2, vT0))
    k.I('v_lshlrev_b32 v%d, 4, v%d' % (vT3, vT2))
    k.I('v_lshl_add_u32 v%d, v%d, 8, v%d' % (vKdo, vT1, vT3))
    k.I('v_bfe_u32 v%d, v%d, 4, 1' % (vT0, L))
    k.I('v_bfe_u32 v%d, v%d, 3, 1' % (vT1, L))
    k.I('v_lshrrev_b32 v%d, 5, v%d' % (vT2, L))
    k.I('v_lshlrev_b32 v%d, 2, v%d' % (vT3, vT0))
    k.I('v_lshl_add_u32 v%d, v%d, 3, v%d' % (vT3, vT1, vT3))
    k.I('v_lshl_add_u32 v%d, v%d, 4, v%d' % (vT3, vT2, vT3))
    k.I('s_lshl_b32 s%d, s%d, 4' % (sT0, sQt))
    k.I('s_add_u32 s%d, s%d, s%d' % (sT0, sT0, sG))
    k.I('s_lshl_b32 s%d, s%d, 1' % (sT0, sT0))
    k.I('v_add_u32 v%d, s%d, v%d' % (vT3, sT0, vT3))
    k.I('v_mul_u32_u24 v%d, 0x500, v%d' % (vT3, vT3))
    k.I('v_and_b32 v%d, 7, v%d' % (vT1, L))
    k.I('v_xor_b32 v%d, v%d, v%d' % (vT1, vT1, vT0))
    k.I('v_lshl_add_u32 v%d, v%d, 4, v%d' % (vXdo, vT1, vT3))
    k.I('s_mul_i32 s%d, s%d, %d' % (sMK, sQt, 2 * 1056))
    k.I('s_mul_i32 s%d, s%d, %d' % (sT0, sG, KRING))
    k.I('s_add_u32 s%d, s%d, s%d' % (sMK, sMK, sT0))
    k.I('s_add_u32 s%d, s%d, %d' % (sMK, sMK, LDS_K))
    k.I('s_mul_i32 s%d, s%d, %d' % (sMV, sQt, 2 * 1088))
    k.I('s_mul_i32 s%d, s%d, %d' % (sT0, sG, VRING))
    k.I('s_add_u32 s%d, s%d, s%d' % (sMV, sMV, sT0))
    k.I('s_add_u32 s%d, s%d, %d' % (sMV, sMV, LDS_V))
    k.I('s_mul_i32 s%d, s%d, %d' % (sMX, sQt, 4224))
    k.I('s_mul_i32 s%d, s%d, %d' % (sT0, sG, 2112))
    k.I('s_add_u32 s%d, s%d, s%d' % (sMX, sMX, sT0))
    k.I('s_add_u32 s%d, s%d, %d' % (sMX, sMX, LDS_K))
    k.wait(lg=0)
    k.I('s_mul_i32 s%d, s%d, %d' % (sT0, sB, 163840))
    srd(k, sX, 4, 5, 's%d' % sT0, 163840)
    k.I('s_lshl_b32 s%d, s%d, 8' % (sT0, sH))
    srd(k, sWQ, 10, 11, 's%d' % sT0, 0)
    k.I('s_sub_u32 s%d, %d, s%d' % (sWQ + 2, 640 * 8192, sT0))

    def dmaW(i):
        slot = i % 4
        for j in range(2):
            yield ('s_add_u32 m0, s%d, %d' % (sMV, slot * VSLOT + j * 1088), None)
            yield ('buffer_load_dwordx4 v%d, %s, s%d offen lds' % ([vWd0, vWd1][j], sr(sWQ, 4), sWo), 'W%d' % i)
        yield ('s_add_u32 s%d, s%d, %d' % (sWo, sWo, 32 * 8192), None)
        if i % 2 == 1:
            yield ('s_cmp_eq_u32 s%d, %d' % (sWo, 640 * 8192), None)
            yield ('s_cselect_b32 s%d, 0, s%d' % (sWo, sWo), None)

    def dmaX(c):
        par = c % 2
        for j in range(2):
            yield ('s_add_u32 m0, s%d, %d' % (sMX, par * 16896 + j * 1056 - j * 1280), None)
            off = ' offset:%d' % (j * 1280) if j else ''
            yield ('buffer_load_dwordx4 v%d, %s, s%d offen%s lds' % (vXdo, sr(sX, 4), sXo, off), 'X%d' % c)
        yield ('s_add_u32 s%d, s%d, 128' % (sXo, sXo), None)
        yield ('s_cmp_eq_u32 s%d, 1280' % sXo, None)
        yield ('s_cselect_b32 s%d, 0, s%d' % (sXo, sXo), None)

    def dmaK(t):
        slot = t % 4
        for j in range(2):
            yield ('s_add_u32 m0, s%d, %d' % (sMK, slot * KSLOT + j * (1056 - 256)), None)
            off = ' offset:256' if j else ''
            yield ('buffer_load_dwordx4 v%d, %s, s%d offen%s%s lds' % (vKdo, sr(sK, 4), sKo, off, cfg['kvmod']), 'K%d' % t)
        yield ('s_add_u32 s%d, s%d, 8192' % (sKo, sKo), None)

    def dmaV(t):
        slot = t % 4
        for j in range(2):
            yield ('s_add_u32 m0, s%d, %d' % (sMV, slot * VSLOT + j * (1088 - 256)), None)
            off = ' offset:256' if j else ''
            yield ('buffer_load_dwordx4 v%d, %s, s%d offen%s%s lds' % (vVdo, sr(sV, 4), sVo, off, cfg['kvmod']), 'V%d' % t)
        yield ('s_add_u32 s%d, s%d, 8192' % (sVo, sVo), None)

    def dmaWo(j):
        yield ('s_add_u32 s%d, s%d, %d' % (sT0, sM, j), None)
        yield ('s_and_b32 s%d, s%d, 3' % (sT0, sT0), None)
        yield ('s_mul_i32 s%d, s%d, %d' % (sT0, sT0, 2 * 128 * 1280), None)
        yield ('s_add_u32 s%d, s%d, s%d' % (sWo, sT0, sWb), None)
        yield ('s_add_u32 s%d, s%d, %d' % (sXo, sWo, 128 * 1280), None)
        for hh in range(2):
            for n in range(5):
                yield ('s_add_u32 m0, s%d, %d' % (sMW, ((2 * j + hh) % 4) * WSLOT + n * 1024), None)
                yield ('buffer_load_dwordx4 v%d, %s, s%d offen lds' % (vWoD[n], sr(sWO, 4), [sWo, sXo][hh]), 'wo%d' % j)

    def emit(g):
        for t, tag in g:
            k.I(t, tag)

    emit(dmaW(0)); emit(dmaX(0)); emit(dmaW(1)); emit(dmaX(1)); emit(dmaW(2)); emit(dmaW(3))
    k.I('s_lshl_b32 s%d, s%d, 5' % (sT0, sB))
    k.I('s_add_u32 s%d, s%d, s%d' % (sT0, sT0, sH))
    k.I('s_lshl_b32 s%d, s%d, 17' % (sT0, sT0))
    srd(k, sK, 6, 7, 's%d' % sT0, 131072)
    srd(k, sV, 8, 9, 's%d' % sT0, 131072)
    srd(k, sWO, 12, 13, None, 4096 * 1280)
    srd(k, sWS, 18, 19, None, WS_REC)
    k.I('s_mov_b32 s%d, 0' % sKo)
    k.I('s_mov_b32 s%d, 0' % sVo)
    k.I('s_mov_b32 s%d, 0x%x' % (sThr, THR))
    k.I('s_mov_b32 s%d, 0x%x' % (sC, CSCALE))
    k.I('s_lshl_b32 s%d, s%d, 7' % (sT0, sB))
    k.I('s_add_u32 s%d, s%d, %d' % (sT0, sT0, F_OFF + 131072))
    k.I('buffer_load_dword v%d, off, %s, s%d sc1' % (NEGM, sr(sWS, 4), sT0), 'ep')
    k.I('s_lshl_b32 s%d, s%d, 6' % (sWb, sKq))
    k.I('s_add_u32 s%d, s%d, s%d' % (sWb, sWb, sW))
    k.I('s_mul_i32 s%d, s%d, %d' % (sWb, sWb, 16 * 1280))
    k.I('s_mul_i32 s%d, s%d, 320' % (sT0, sM))
    k.I('s_add_u32 s%d, s%d, s%d' % (sWb, sWb, sT0))
    k.I('s_mul_i32 s%d, s%d, 5120' % (sMW, sW))
    k.I('v_lshlrev_b32 v%d, 4, v%d' % (vL16, L))
    for n in range(5):
        k.I('v_add_u32 v%d, %d, v%d' % (vT0, 64 * n, L))
        k.I('v_mul_u32_u24 v%d, 3277, v%d' % (vT1, vT0))
        k.I('v_lshrrev_b32 v%d, 16, v%d' % (vT1, vT1))
        k.I('v_mul_u32_u24 v%d, 960, v%d' % (vT1, vT1))
        k.I('v_lshl_add_u32 v%d, v%d, 4, v%d' % (vWoD[n], vT0, vT1))
    k.I('v_and_b32 v%d, 7, v%d' % (vT0, L))
    k.I('v_mul_u32_u24 v%d, 1056, v%d' % (vT0, vT0))
    k.I('v_bfe_u32 v%d, v%d, 3, 2' % (vT1, L))
    k.I('v_lshl_add_u32 v%d, v%d, 8, v%d' % (vT0, vT1, vT0))
    k.I('v_lshrrev_b32 v%d, 5, v%d' % (vT2, L))
    k.I('v_and_b32 v%d, 1, v%d' % (vT1, vT1))
    k.I('v_xor_b32 v%d, v%d, v%d' % (vT1, vT1, vT2))
    k.I('v_lshl_add_u32 v%d, v%d, 4, v%d' % (vT0, vT1, vT0))
    k.I('s_mul_i32 s%d, s%d, %d' % (sT0, sG, KRING))
    k.I('s_add_u32 s%d, s%d, %d' % (sT0, sT0, LDS_K))
    k.I('v_add_u32 v%d, s%d, v%d' % (vKra, sT0, vT0))
    k.I('v_and_b32 v%d, 1, v%d' % (vT0, L))
    k.I('v_lshlrev_b32 v%d, 4, v%d' % (vT0, vT0))
    k.I('v_bfe_u32 v%d, v%d, 1, 1' % (vT1, L))
    k.I('v_lshl_add_u32 v%d, v%d, 3, v%d' % (vT0, vT1, vT0))
    k.I('v_bfe_u32 v%d, v%d, 4, 1' % (vT3, L))
    k.I('v_xor_b32 v%d, s%d, v%d' % (vT1, sG, vT3))
    k.I('v_lshl_add_u32 v%d, v%d, 5, v%d' % (vWoR[0], vT1, vT0))
    k.I('v_bfe_u32 v%d, v%d, 2, 2' % (vT1, L))
    k.I('v_lshl_add_u32 v%d, v%d, 3, v%d' % (vWoR[1], vT2, vT1))
    k.I('v_mul_u32_u24 v%d, 320, v%d' % (vWoR[1], vWoR[1]))
    k.I('s_mul_i32 s%d, s%d, %d' % (sT0, sG, WSLOT))
    k.I('v_add3_u32 v%d, v%d, v%d, s%d' % (vWoR[0], vWoR[0], vWoR[1], sT0))
    k.I('v_add_u32 v%d, %d, v%d' % (vWoR[1], 2 * WSLOT, vWoR[0]))
    k.I('v_lshl_add_u32 v%d, v%d, 5, v%d' % (vT0, vT3, vT0))
    k.I('v_mul_u32_u24 v%d, 1088, v%d' % (vT1, vT1))
    k.I('s_mul_i32 s%d, s%d, %d' % (sT0, sG, VRING))
    k.I('s_add_u32 s%d, s%d, %d' % (sT0, sT0, LDS_V))
    k.I('v_add3_u32 v%d, v%d, v%d, s%d' % (vT0, vT0, vT1, sT0))
    k.I('v_lshl_add_u32 v%d, v%d, 8, v%d' % (vWra, vT2, vT0))
    k.I('v_mul_u32_u24 v%d, %d, v%d' % (vT1, 4 * 1088, vT2))
    k.I('v_add_u32 v%d, v%d, v%d' % (vVra, vT0, vT1))
    k.I('v_and_b32 v%d, 3, v%d' % (vT0, L))
    k.I('v_mul_u32_u24 v%d, 1056, v%d' % (vT0, vT0))
    k.I('v_bfe_u32 v%d, v%d, 3, 1' % (vT1, L))
    k.I('v_lshl_add_u32 v%d, v%d, 7, v%d' % (vT0, vT1, vT0))
    k.I('v_lshl_add_u32 v%d, v%d, 9, v%d' % (vT0, vT3, vT0))
    k.I('v_bfe_u32 v%d, v%d, 2, 1' % (vT1, L))
    k.I('v_lshl_add_u32 v%d, v%d, 8, v%d' % (vT0, vT1, vT0))
    k.I('v_xor_b32 v%d, v%d, v%d' % (vT1, vT1, vT2))
    k.I('v_lshl_add_u32 v%d, v%d, 4, v%d' % (vT0, vT1, vT0))
    k.I('s_mul_i32 s%d, s%d, 4224' % (sT0, sQt))
    k.I('s_add_u32 s%d, s%d, %d' % (sT0, sT0, LDS_K))
    k.I('v_add_u32 v%d, s%d, v%d' % (vXra, sT0, vT0))
    for r in range(64):
        k.I('v_mov_b32 v%d, 0' % (O + r))

    def rdW(i):
        out = []
        for s in range(2):
            for T in range(4):
                for e in range(2):
                    d = WF[i % 2] + (s * 4 + T) * 4 + 2 * e
                    out.append(('ds_read_b64_tr_b16 %s, v%d offset:%d' % (
                        vr(d, 2), vWra, (i % 4) * VSLOT + e * 4352 + s * 512 + T * 64), None))
        return out

    def rdX(c):
        return [('ds_read_b128 %s, v%d offset:%d' % (vr(XF[c % 2] + 4 * s, 4), vXra, (c % 2) * 16896 + 32 * s), None)
                for s in range(4)]

    def rdK(t, dst):
        return [('ds_read_b128 %s, v%d offset:%d' % (vr(dst + 4 * s, 4), vKra, (t % 4) * KSLOT + 32 * s), None)
                for s in range(8)]

    def rdV(t):
        out = []
        for s in range(2):
            for T in range(4):
                for e in range(2):
                    d = VF + (s * 4 + T) * 4 + 2 * e
                    out.append(('ds_read_b64_tr_b16 %s, v%d offset:%d' % (
                        vr(d, 2), vVra, (t % 4) * VSLOT + (2 * s + e) * 256 + T * 64), None))
        return out

    def sched(mf, gaps):
        for g, m in enumerate(mf):
            k.I(m)
            for x in gaps.get(g, []):
                if callable(x):
                    x()
                else:
                    k.I(x[0], x[1])

    def place(gaps, dm, g0, gmax, st=1):
        g = g0
        n = sum(1 for t, tag in dm if tag is not None)
        while st > 1 and g0 + (n - 1) * st > gmax:
            st -= 1
        for t, tag in dm:
            gaps[min(g, gmax)].append((t, tag))
            if tag is not None:
                g += st
                n -= 1
                if n == 0:
                    g -= st

    stamp(k, cfg, 1)
    k.wait_tag('W0', 'X0')
    k.I('s_barrier')
    stamp(k, cfg, 2)
    emit(rdX(0)); emit(rdW(0))
    NQ = 20
    for i in range(NQ):
        k.mark('qp')
        need = []
        if i + 1 < NQ:
            need.append('W%d' % (i + 1))
        if i % 2 == 1 and (i + 1) // 2 < 10:
            need.append('X%d' % ((i + 1) // 2))
        if i == 19:
            need.append('K0')
        k.wait_tag(*need, lg=0)
        k.I('s_barrier')
        stamp(k, cfg, 'q%d' % i)
        c = i // 2
        mf = []
        for s in range(2):
            for T in range(4):
                mf.append('%s %s, %s, %s, %s' % (MF32, vr(O + 16 * T, 16), vr(WF[i % 2] + (s * 4 + T) * 4, 4),
                                                 vr(XF[c % 2] + ((i % 2) * 2 + s) * 4, 4), vr(O + 16 * T, 16)))
        gaps = {g: [] for g in range(8)}
        rd = rdW(i + 1) if i + 1 < NQ else rdK(0, KF)
        if i % 2 == 1 and (i + 1) // 2 < 10:
            rd = rdX((i + 1) // 2) + rd
        per = -(-len(rd) // 6)
        for n, r in enumerate(rd):
            gaps[n // per].append(r)
        dm = []
        if i % 2 == 0:
            if c + 2 < 10:
                dm += list(dmaX(c + 2))
            elif i == 16:
                dm += list(dmaK(0)) + list(dmaK(1))
            elif i == 18:
                dm += list(dmaK(2)) + list(dmaK(3))
        if i + 4 < NQ:
            dm += list(dmaW(i + 4))
        elif i - 16 < 3:
            dm += list(dmaV(i - 16))
        place(gaps, dm, cfg['qg0'], 7, cfg['qst'] * (1 if i % 2 == 0 else 2))
        sched(mf, gaps)
    k.mark('qp')
    stamp(k, cfg, 3)
    k.wait_tag('K1')
    k.I('s_barrier')
    emit(rdK(1, VF))
    k.I('v_readfirstlane_b32 s%d, v%d' % (sNon, NEGM))
    k.I('s_mul_i32 s%d, s%d, 0x9e3779b1' % (sNon, sNon))
    k.I('s_add_u32 s%d, s%d, 0x7f4a7c15' % (sNon, sNon))
    for T in range(4):
        for r in range(16):
            k.I('v_mul_f32 v%d, s%d, v%d' % (O + 16 * T + r, sC, O + 16 * T + r))
        for p in range(8):
            k.I('v_cvt_pk_bf16_f32 v%d, v%d, v%d' % (Q + 8 * T + p, O + 16 * T + 2 * p, O + 16 * T + 2 * p + 1))
    k.wait_tag('K2', lg=0)
    k.I('s_barrier')
    for r in range(64):
        k.I('v_mov_b32 v%d, 0' % (O + r))

    def qk(t, kf, c0):
        d = S[t % 2]
        return ['%s %s, %s, %s, %s' % (MF32, vr(d, 16), vr(kf + 4 * s, 4), vr(Q + 4 * s, 4),
                                       (c0 if s == 0 else vr(d, 16))) for s in range(8)]

    gaps = {g: [] for g in range(16)}
    place(gaps, list(dmaK(4)) + list(dmaK(5)), 0, 15, cfg['ast'])
    for n, r in enumerate(rdK(2, KF)):
        gaps[8 + n // 2].append(r)
    sched(qk(0, KF, '0') + qk(1, VF, '0'), gaps)

    def maxtree(kk, src, dst):
        kk.I('v_max3_f32 v%d, v%d, v%d, v%d' % (dst, src, src + 1, src + 2))
        for r in range(3, 15, 2):
            kk.I('v_max3_f32 v%d, v%d, v%d, v%d' % (dst, dst, src + r, src + r + 1))
        kk.I('v_max_f32 v%d, v%d, v%d' % (dst, dst, src + 15))

    maxtree(k, S[0], vT0)
    k.I('v_mov_b32 v%d, v%d' % (vT1, vT0))
    k.I('v_permlane32_swap_b32 v%d, v%d' % (vT0, vT1))
    k.I('v_max_f32 v%d, v%d, v%d' % (vT0, vT0, vT1))
    for r in range(16):
        k.I('v_sub_f32 v%d, 0, v%d' % (NEGM + r, vT0))
    for r in range(16):
        k.I('v_sub_f32 v%d, v%d, v%d' % (S[0] + r, S[0] + r, vT0))
    for r in range(16):
        k.I('v_exp_f32 v%d, v%d' % (VF + r, S[0] + r))
    for r in range(16):
        k.I('v_sub_f32 v%d, v%d, v%d' % (S[1] + r, S[1] + r, vT0))
    k.I('v_add_f32 v%d, v%d, v%d' % (vL, VF, VF + 1))
    for r in range(2, 16):
        k.I('v_add_f32 v%d, v%d, v%d' % (vL, vL, VF + r))
    for p in range(8):
        k.I('v_cvt_pk_bf16_f32 v%d, v%d, v%d' % (P[0] + p, VF + 2 * p, VF + 2 * p + 1))

    NT = 16
    sites = []
    stamp(k, cfg, 4)
    wo0 = list(dmaWo(0))
    wo0a, wo0b = wo0[:5 + 10], wo0[5 + 10:]
    for t in range(NT):
        k.mark('at')
        need = ['V%d' % t]
        if t + 3 < NT:
            need.append('K%d' % (t + 3))
        if t == 13:
            need.append('K17')
        k.wait_tag(*need, lg=0)
        k.I('s_barrier')
        stamp(k, cfg, 'a%d' % t)
        mf = []
        if t + 2 < NT:
            mf += qk(t + 2, KF, vr(NEGM, 16))
        nq = len(mf)
        for s in range(2):
            for T in range(4):
                mf.append('%s %s, %s, %s, %s' % (MF32, vr(O + 16 * T, 16), vr(VF + (s * 4 + T) * 4, 4),
                                                 vr(P[t % 2] + 4 * s, 4), vr(O + 16 * T, 16)))
        ng = len(mf)
        gaps = {g: [] for g in range(ng)}
        rv = rdV(t)
        if nq:
            for n, r in enumerate(rv):
                gaps[n // 2].append(r)
        else:
            emit(rv)
        if t + 3 < NT:
            for n, r in enumerate(rdK(t + 3, KF)):
                gaps[4 + n].append(r)
        dm = []
        if t < 12:
            dm += list(dmaK(t + 6))
        if t + 3 < NT:
            dm += list(dmaV(t + 3))
        if t == 12 and cfg['touch']:
            dm += [('s_lshl_b32 s%d, s%d, 5' % (sT0, sKq), None),
                   ('s_add_u32 s%d, s%d, s%d' % (sT0, sT0, sI), None),
                   ('s_mul_i32 s%d, s%d, 40960' % (sT0, sT0), None),
                   ('s_add_u32 s%d, s%d, s%d' % (sT0, sT0, sMW), None),
                   ('v_mul_u32_u24 v%d, 80, v%d' % (vT3, L), None),
                   ('buffer_load_dword v%d, v%d, %s, s%d offen' % (vT2, vT3, sr(sWO, 4), sT0), 'touch')]
        if t == 13:
            dm += wo0a
        if t == 14:
            dm += wo0b
        place(gaps, dm, cfg['dmagap'] if t < 14 else 1, ng - 1, cfg['ast'])
        tail = []
        if t + 1 < NT:
            u = t + 1
            su, pu = S[u % 2], P[u % 2]
            sm = []
            for j in range(16):
                sm.append((j, 'v_exp_f32 v%d, v%d' % (TMP + j % 8, su + j)))
                if j == 1:
                    sm.append((j + 1, 'v_add_f32 v%d, v%d, v%d' % (vLs, TMP, TMP + 1)))
                elif j > 1:
                    sm.append((j + 1, 'v_add_f32 v%d, v%d, v%d' % (vLs, vLs, TMP + j % 8)))
                if j % 2 == 1:
                    sm.append((j + 1, 'v_cvt_pk_bf16_f32 v%d, v%d, v%d' % (pu + j // 2, TMP + (j - 1) % 8, TMP + j % 8)))
            sm.sort(key=lambda x: x[0])
            for pos, tx in sm:
                if pos >= 16:
                    tail.append(tx)
                else:
                    gaps[pos * ng // 16].append((tx, None))
        sched(mf, gaps)
        if t + 1 < NT:
            for tx in tail:
                k.I(tx)
            site = (t % 4) if (t < 12 and cfg.get('prof') != 3) else t
            k.I('v_cmp_ngt_f32 vcc, s%d, v%d' % (sThr, vLs))
            k.I('s_cbranch_vccnz L_fb%d' % site)
            k.label('L_ret%d' % site)
            k.I('v_add_f32 v%d, v%d, v%d' % (vL, vL, vLs))
            if site not in [s for s, _ in sites]:
                sites.append((site, (t + 1) % 2))
    k.mark('at')
    stamp(k, cfg, 5)
    ACC, OB, WB = 0, [160, 80, 112, 160], [192, 212]
    PL = 144
    k.I('v_mov_b32 v%d, v%d' % (vT1, vL))
    k.I('v_permlane32_swap_b32 v%d, v%d' % (vL, vT1))
    k.I('v_add_f32 v%d, v%d, v%d' % (vL, vL, vT1))
    k.I('v_rcp_f32 v%d, v%d' % (vL, vL))
    k.I('s_lshl_b32 s%d, s%d, 5' % (sKo, sB))
    k.I('s_add_u32 s%d, s%d, s%d' % (sKo, sKo, sH))
    k.I('s_lshl_b32 s%d, s%d, 2' % (sKo, sKo))
    k.I('s_add_u32 s%d, s%d, s%d' % (sKo, sKo, sQt))
    k.I('s_lshl_b32 s%d, s%d, 13' % (sKo, sKo))
    k.I('s_add_u32 s%d, s%d, 4096' % (sVo, sKo))
    for T in range(4):
        for s in range(2):
            b = O + 16 * T + 8 * s
            ks = T * 2 + s
            d = OB[0] + ks * 4
            for r in range(8):
                k.I('v_mul_f32 v%d, v%d, v%d' % (b + r, vL, b + r))
            for p in range(4):
                k.I('v_cvt_pk_bf16_f32 v%d, v%d, v%d' % (d + p, b + 2 * p, b + 2 * p + 1))
            k.I('buffer_store_dwordx4 %s, v%d, %s, s%d offen offset:%d sc1' % (
                vr(d, 4), vL16, sr(sWS, 4), [sKo, sVo][ks // 4], 1024 * (ks % 4)), 'ost')
    k.wait_tag('wo0')
    k.I('s_barrier')
    stamp(k, cfg, 6)
    k.I('s_lshl_b32 s%d, s%d, 2' % (sMK, sB))
    k.I('s_add_u32 s%d, s%d, s%d' % (sMV, sMK, sM))
    k.I('s_add_u32 s%d, s%d, s%d' % (sMK, sMK, sKq))
    for r, off in ((sMK, F_OFF), (sMV, F_OFF + 65536)):
        k.I('s_lshl_b32 s%d, s%d, 3' % (r, r))
        k.I('s_add_u32 s%d, s%d, s%d' % (r, r, sW))
        k.I('s_lshl_b32 s%d, s%d, 7' % (r, r))
        k.I('s_add_u32 s%d, s%d, %d' % (r, r, off))
    k.I('v_mov_b32 v%d, s%d' % (vT3, sNon))

    def rdWo(j, ks):
        out = []
        for t in range(5):
            for e in range(2):
                d = WB[ks % 2] + t * 4 + 2 * e
                out.append(('ds_read_b64_tr_b16 %s, v%d offset:%d' % (
                    vr(d, 2), vWoR[j % 2], ks * 5120 + e * 1280 + t * 64), None))
        return out

    def flag(sgrp, sidx, tagwait):
        def f():
            k.I('s_lshl_b32 s%d, s%d, 2' % (sT1, sidx))
            k.I('s_add_u32 s%d, s%d, s%d' % (sT1, sT1, sgrp))
            k.wait_tag(tagwait)
            k.I('s_mov_b64 exec, 1')
            k.I('buffer_store_dword v%d, off, %s, s%d sc1' % (vT3, sr(sWS, 4), sT1), 'flag')
            k.I('s_mov_b64 exec, -1')
        return f

    def op_step(j, extra):
        emit(rdWo(j, 0))
        mf = []
        gaps = {g: [] for g in range(40)}
        for ks in range(8):
            for t in range(5):
                a = ACC + 16 * t
                c = '0' if (j == 0 and ks == 0) else vr(a, 16)
                mf.append('%s %s, %s, %s, %s' % (MF32, vr(a, 16), vr(WB[ks % 2] + 4 * t, 4), vr(OB[j] + 4 * ks, 4), c))
            if ks + 1 < 8:
                for n, r in enumerate(rdWo(j, ks + 1)):
                    gaps[ks * 5 + n // 3].append(r)
        extra(gaps)
        sched(mf, gaps)

    def poll(name, sgrp):
        k.wait(vm=0, lg=0)
        k.I('s_mov_b32 s%d, 0x40000' % sLoop)
        k.I('s_mov_b64 exec, 1')
        k.label('L_%s' % name)
        k.I('buffer_load_dwordx4 %s, off, %s, s%d sc1' % (vr(PL, 4), sr(sWS, 4), sgrp))
        for r in range(4):
            k.I('v_xor_b32 v%d, s%d, v%d' % (PL + r, sNon, PL + r))
        k.I('v_or3_b32 v%d, v%d, v%d, v%d' % (PL, PL, PL + 1, PL + 2))
        k.I('v_or_b32 v%d, v%d, v%d' % (PL, PL, PL + 3))
        k.I('v_readfirstlane_b32 s%d, v%d' % (sT0, PL))
        k.I('s_cmp_eq_u32 s%d, 0' % sT0)
        k.I('s_cbranch_scc1 L_%s_ok' % name)
        k.I('s_sleep %d' % cfg['sleep'])
        k.I('s_sub_u32 s%d, s%d, 1' % (sLoop, sLoop))
        k.I('s_cmp_lg_u32 s%d, 0' % sLoop)
        k.I('s_cbranch_scc1 L_%s' % name)
        k.label('L_%s_ok' % name)
        k.I('s_mov_b64 exec, -1')

    def ldO(j):
        yield ('s_add_u32 s%d, s%d, %d' % (sT0, sM, j), None)
        yield ('s_and_b32 s%d, s%d, 3' % (sT0, sT0), None)
        yield ('s_sub_u32 s%d, s%d, s%d' % (sT0, sT0, sM), None)
        yield ('s_lshl_b32 s%d, s%d, 16' % (sT0, sT0), None)
        yield ('s_add_u32 s%d, s%d, s%d' % (sT1, sT0, sKo), None)
        yield ('s_add_u32 s%d, s%d, s%d' % (sT2, sT0, sVo), None)
        for ks in range(8):
            yield ('buffer_load_dwordx4 %s, v%d, %s, s%d offen offset:%d sc1' % (
                vr(OB[j] + 4 * ks, 4), vL16, sr(sWS, 4), [sT1, sT2][ks // 4], 1024 * (ks % 4)), 'o%d' % j)

    def ex0(gaps):
        place(gaps, list(dmaWo(1)), 0, 39, cfg['ost'])
        gaps[cfg['flagpos']].append(flag(sMK, sM, 'ost'))
    op_step(0, ex0)
    k.wait_tag('wo1', lg=0)
    k.I('s_barrier')
    stamp(k, cfg, 7)
    emit(dmaWo(2))
    poll('p1', sMK)
    stamp(k, cfg, 8)
    emit(ldO(1)); emit(ldO(2)); emit(ldO(3))
    op_step(1, lambda gaps: None)
    stamp(k, cfg, 'o1')
    k.wait(lg=0)
    k.I('s_barrier')
    op_step(2, lambda gaps: place(gaps, list(dmaWo(3)), 0, 39, cfg['ost']))
    stamp(k, cfg, 'o2')
    k.wait_tag('wo3', lg=0)
    k.I('s_barrier')
    stamp(k, cfg, 'o2b')
    op_step(3, lambda gaps: None)
    stamp(k, cfg, 9)
    k.I('s_mul_i32 s%d, s%d, 10240' % (sT0, sW))
    k.I('v_add_u32 v%d, s%d, v%d' % (vT0, sT0, vL16))
    k.I('s_xor_b32 s%d, s%d, 4' % (sT0, sW))
    k.I('s_mul_i32 s%d, s%d, 10240' % (sT0, sT0))
    k.I('v_add_u32 v%d, s%d, v%d' % (vT1, sT0, vL16))
    for t in range(5):
        for hh in range(2):
            k.I('ds_write_b128 v%d, %s offset:%d' % (vT0, vr(ACC + 16 * t + 8 + 4 * hh, 4), (2 * t + hh) * 1024))
    k.I('s_lshl_b32 s%d, s%d, 2' % (sKo, sB))
    k.I('s_add_u32 s%d, s%d, s%d' % (sKo, sKo, sM))
    k.I('s_lshl_b32 s%d, s%d, 2' % (sKo, sKo))
    k.I('s_add_u32 s%d, s%d, s%d' % (sKo, sKo, sQt))
    k.I('s_lshl_b32 s%d, s%d, 3' % (sKo, sKo))
    k.I('s_add_u32 s%d, s%d, s%d' % (sKo, sKo, sG))
    k.I('s_mul_i32 s%d, s%d, 10240' % (sKo, sKo))
    k.I('s_add_u32 s%d, s%d, %d' % (sKo, sKo, P_OFF))
    k.wait(lg=0)
    k.I('s_barrier')
    RX = 80
    stamp(k, cfg, 'r')
    for n in range(10):
        k.I('ds_read_b128 %s, v%d offset:%d' % (vr(RX + 4 * n, 4), vT1, n * 1024))
    k.I('s_cmp_eq_u32 s%d, s%d' % (sQt, sKq))
    k.I('s_cbranch_scc1 L_final')
    sv = (list(k.vmq), list(k.lgq))
    k.I('s_mul_i32 s%d, s%d, 20480' % (sT0, sKq))
    k.I('s_add_u32 s%d, s%d, s%d' % (sKo, sKo, sT0))
    for n in range(10):
        a = ACC + 16 * (n // 2) + 4 * (n % 2)
        for r in range(4):
            k.I('v_add_f32 v%d, v%d, v%d' % (a + r, a + r, RX + 4 * n + r))
        k.I('buffer_store_dwordx4 %s, v%d, %s, s%d offen offset:%d sc1' % (
            vr(a, 4), vL16, sr(sWS, 4), sKo, 1024 * (n % 4)), 'pst')
        if n % 4 == 3:
            k.I('s_add_u32 s%d, s%d, 4096' % (sKo, sKo))
    flag(sMV, sKq, 'pst')()
    stamp(k, cfg, 10)
    if cfg.get('prof'):
        if cfg['prof'] in (1, 4):
            k.I('s_mov_b32 s%d, 0' % (70 + 2 * 11))
        k.I('s_branch L_fin')
    else:
        k.I('s_endpgm')
    k.label('L_final')
    k.vmq, k.lgq = sv
    k.I('s_nop 4')
    flag(sMV, sKq, 'none')()
    for n in range(10):
        a = ACC + 16 * (n // 2) + 4 * (n % 2)
        for r in range(4):
            k.I('v_add_f32 v%d, v%d, v%d' % (a + r, a + r, RX + 4 * n + r))
    srd(k, sOUT, 14, 15, None, 2048 * 1280)
    k.I('v_and_b32 v%d, 31, v%d' % (vT0, L))
    k.I('v_mul_u32_u24 v%d, 1280, v%d' % (vT0, vT0))
    k.I('v_lshrrev_b32 v%d, 5, v%d' % (vT1, L))
    k.I('v_lshl_add_u32 v%d, v%d, 4, v%d' % (vT0, vT1, vT0))
    k.I('s_lshl_b32 s%d, s%d, 2' % (sVo, sB))
    k.I('s_add_u32 s%d, s%d, s%d' % (sVo, sVo, sQt))
    k.I('s_mul_i32 s%d, s%d, %d' % (sVo, sVo, 32 * 1280))
    k.I('s_mul_i32 s%d, s%d, 320' % (sT0, sM))
    k.I('s_add_u32 s%d, s%d, s%d' % (sVo, sVo, sT0))
    k.I('s_lshl_b32 s%d, s%d, 5' % (sT0, sG))
    k.I('s_add_u32 s%d, s%d, s%d' % (sVo, sVo, sT0))
    stamp(k, cfg, 10)
    poll('p2', sMV)
    stamp(k, cfg, 11)
    for j in range(1, 4):
        k.I('s_add_u32 s%d, s%d, %d' % (sT0, sKq, j))
        k.I('s_and_b32 s%d, s%d, 3' % (sT0, sT0))
        k.I('s_mul_i32 s%d, s%d, 20480' % (sT0, sT0))
        k.I('s_add_u32 s%d, s%d, s%d' % (sT0, sT0, sKo))
        for n in range(10):
            k.I('buffer_load_dwordx4 %s, v%d, %s, s%d offen offset:%d sc1' % (
                vr(RX + 40 * (j - 1) + 4 * n, 4), vL16, sr(sWS, 4), sT0, 1024 * (n % 4)))
            if n % 4 == 3:
                k.I('s_add_u32 s%d, s%d, 4096' % (sT0, sT0))
    k.I('s_or_b32 s%d, s%d, s%d' % (sT0, sW, sM))
    k.I('s_cmp_lg_u32 s%d, 0' % sT0)
    k.I('s_cbranch_scc1 L_noep')
    k.I('s_lshl_b32 s%d, s%d, 7' % (sT0, sB))
    k.I('s_add_u32 s%d, s%d, %d' % (sT0, sT0, F_OFF + 131072))
    k.I('s_mov_b64 exec, 1')
    k.raw('buffer_store_dword v%d, off, %s, s%d sc1' % (vT3, sr(sWS, 4), sT0))
    k.I('s_mov_b64 exec, -1')
    k.raw('s_waitcnt vmcnt(0)')
    k.label('L_noep')
    for j in range(3):
        for n in range(10):
            a = ACC + 16 * (n // 2) + 4 * (n % 2)
            for r in range(4):
                k.I('v_add_f32 v%d, v%d, v%d' % (a + r, a + r, RX + 40 * j + 4 * n + r))
            if j == 2 and n % 2 == 1:
                t = n // 2
                a = ACC + 16 * t
                for p in range(4):
                    k.I('v_cvt_pk_bf16_f32 v%d, v%d, v%d' % (a + 8 + p, a + 2 * p, a + 2 * p + 1))
                k.I('buffer_store_dwordx4 %s, v%d, %s, s%d offen offset:%d' % (
                    vr(a + 8, 4), vT0, sr(sOUT, 4), sVo, 64 * t))
    k.label('L_fin')
    prof_out(k, cfg, sW, 13, 0, 1)
    k.label('L_end')
    k.I('s_endpgm')
    if cfg.get('prof') != 3:
        k.fold('at', 0, 4, 3, 's%d' % sLoop)
    if cfg.get('prof') != 2:
        k.fold('qp', 0, 4, 4, 's%d' % sLoop)
    T = []
    for site, par in sites:
        T.append('L_fb%d:' % site)
        T.append('    s_mov_b32 s%d, %d' % (sRet, site))
        T.append('    s_branch L_fbp%d' % par)
    for par in range(2):
        f = Kern('fb')
        su, sn, pu = S[par], S[1 - par], P[par]
        f.label('L_fbp%d' % par)
        f.I('s_nop 15')
        maxtree(f, su, vT0)
        f.I('v_mov_b32 v%d, v%d' % (vT1, vT0))
        f.I('v_permlane32_swap_b32 v%d, v%d' % (vT0, vT1))
        f.I('v_max3_f32 v%d, v%d, v%d, 0' % (vT0, vT0, vT1))
        f.I('v_sub_f32 v%d, 0, v%d' % (vT1, vT0))
        f.I('v_exp_f32 v%d, v%d' % (vT1, vT1))
        for r in range(16):
            f.I('v_sub_f32 v%d, v%d, v%d' % (NEGM + r, NEGM + r, vT0))
        for r in range(64):
            f.I('v_mul_f32 v%d, v%d, v%d' % (O + r, O + r, vT1))
        f.I('v_mul_f32 v%d, v%d, v%d' % (vL, vL, vT1))
        for r in range(16):
            f.I('v_sub_f32 v%d, v%d, v%d' % (su + r, su + r, vT0))
            f.I('v_sub_f32 v%d, v%d, v%d' % (sn + r, sn + r, vT0))
        f.I('v_mov_b32 v%d, 0' % vLs)
        for p in range(8):
            f.I('v_exp_f32 v%d, v%d' % (TMP, su + 2 * p))
            f.I('v_exp_f32 v%d, v%d' % (TMP + 1, su + 2 * p + 1))
            f.I('s_nop 0')
            f.I('v_add_f32 v%d, v%d, v%d' % (vLs, vLs, TMP))
            f.I('v_add_f32 v%d, v%d, v%d' % (vLs, vLs, TMP + 1))
            f.I('v_cvt_pk_bf16_f32 v%d, v%d, v%d' % (pu + p, TMP, TMP + 1))
        f.I('s_nop 3')
        mine = [s for s, p in sites if p == par]
        for s in mine[:-1]:
            f.I('s_cmp_eq_u32 s%d, %d' % (sRet, s))
            f.I('s_cbranch_scc1 L_ret%d' % s)
        f.I('s_branch L_ret%d' % mine[-1])
        T.append(f.text())
    k.tail = T
    return k


def desc(name, vg=256):
    return '''.amdhsa_kernel %s
  .amdhsa_next_free_vgpr %d
  .amdhsa_next_free_sgpr 102
  .amdhsa_accum_offset %d
  .amdhsa_group_segment_fixed_size 0
  .amdhsa_kernarg_size 64
  .amdhsa_user_sgpr_count 2
  .amdhsa_user_sgpr_kernarg_segment_ptr 1
  .amdhsa_system_sgpr_workgroup_id_x 1
.end_amdhsa_kernel
''' % (name, vg, vg)


def build(cfg, path, gen=gen_f):
    a = gen(cfg)
    a.report()
    s = HEAD
    s += '; @launch grid=(256,1,1) block=(512,1,1) lds=163840\n'
    s += '.amdgcn_target "amdgcn-amd-amdhsa--gfx950"\n.text\n'
    s += '.globl %s\n.p2align 8\n.type %s,@function\n%s:\n' % (KA, KA, KA)
    s += a.text()
    s += '.section .rodata,"a"\n.p2align 6\n' + desc(KA)
    open(path, 'w').write(s)
    check(path)


DEF = dict(kvmod=' nt', touch=1, dmagap=1, rot=0, flagpos=24, sleep=2, qg0=0, qst=2, ast=4, ost=2, early=0)
if __name__ == '__main__':
    cfg = dict(DEF)
    path = 'f.s'
    for a in sys.argv[1:]:
        kx, v = a.split('=', 1)
        if kx == 'out':
            path = v
        else:
            cfg[kx] = int(v) if v.lstrip('-').isdigit() else v.replace('_', ' ')
    build(cfg, path)
```
